```python
import torch

def _softmax(x, axis=-1):
    return torch.softmax(x, dim=axis)
def _gelu(x):
    return torch.nn.functional.gelu(x, approximate="tanh")
def _silu(x):
    return torch.nn.functional.silu(x)
def _sigmoid(x):
    return torch.sigmoid(x)
def _layernorm(x, axis=-1, eps=1e-5):
    m = x.mean(dim=axis, keepdim=True)
    v = x.var(dim=axis, keepdim=True, unbiased=False)
    return (x - m) / torch.sqrt(v + eps)
def _scatter_add(tgt, idx, src, axis=0):
    return tgt.clone().index_add_(axis, idx, src)
def _segment_sum(src, seg, n):
    out = torch.zeros((n,) + src.shape[1:], dtype=src.dtype)
    return out.index_add_(0, seg, src)
def _pad(x, pw):
    flat = tuple(v for pair in reversed(pw) for v in pair)
    return torch.nn.functional.pad(x, flat)

kernel_name = 'parallel_sum__sliding_local_dilated__moe_arch_mod__prompt'

def setup_inputs():

    _w = (lambda a: (lambda t: t.to(torch.bfloat16) if t.is_floating_point() else t)(torch.as_tensor(a)))
    def _A_setup():
        B, S, D = 1, 2048, 640
        return {
            "x": _w((lambda *s: torch.randn(*s, dtype=torch.bfloat16) * 0.05)(B, S, D)),
            "wqkv": _w((lambda *s: torch.randn(*s, dtype=torch.bfloat16) * 0.05)(D, 3 * D)),
            "wo": _w((lambda *s: torch.randn(*s, dtype=torch.bfloat16) * 0.05)(D, D)),
        }
    _A_in = _A_setup()

    def _B_setup():
        B, S, D, F, C = 1, 2048, 640, 1536, 2
        return {
            "x": _w((lambda *s: torch.randn(*s, dtype=torch.bfloat16) * 0.05)(B, S, D)),
            "w_r": _w((lambda *s: torch.randn(*s, dtype=torch.bfloat16) * 0.05)(D)),
            "w_gate": _w((lambda *s: torch.randn(*s, dtype=torch.bfloat16) * 0.05)(D, F)),
            "w_up": _w((lambda *s: torch.randn(*s, dtype=torch.bfloat16) * 0.05)(D, F)),
            "w_down": _w((lambda *s: torch.randn(*s, dtype=torch.bfloat16) * 0.05)(F, D)),
        }
    _B_in = _B_setup()

    return {
        "A_x": _A_in["x"],
        "A_wqkv": _A_in["wqkv"],
        "A_wo": _A_in["wo"],
        "B_x": _B_in["x"],
        "B_w_r": _B_in["w_r"],
        "B_w_gate": _B_in["w_gate"],
        "B_w_up": _B_in["w_up"],
        "B_w_down": _B_in["w_down"],
    }

def reference(A_x, A_wqkv, A_wo, B_x, B_w_r, B_w_gate, B_w_up, B_w_down):
    def _A_ref(x, wqkv, wo):
        B, S, D = x.shape
        H = 32; Dh = D // H
        W, dil = 8, 2
        qkv = (lambda x, *d: x.permute(*d))((x @ wqkv).reshape(B, S, 3, H, Dh), 2, 0, 3, 1, 4)
        q, k, v = qkv[0], qkv[1], qkv[2]
        scale = Dh ** -0.5
        pos = torch.arange(S)
        off = torch.arange(W) * dil
        idx = pos[:, None] - off[None, :]
        mask = idx >= 0
        idx_c = torch.where(mask, idx, 0).reshape(-1)
        kg = k[:, :, idx_c, :].reshape(B, H, S, W, Dh)
        vg = v[:, :, idx_c, :].reshape(B, H, S, W, Dh)
        logits = torch.einsum("bhsd,bhswd->bhsw", q, kg) * scale
        logits = torch.where(mask[None, None, :, :], logits, -1e9)
        attn = _softmax(logits, axis=-1)
        o = torch.einsum("bhsw,bhswd->bhsd", attn, vg)
        return (lambda x, *d: x.permute(*d))(o, 0, 2, 1, 3).reshape(B, S, D) @ wo

    def _B_ref(x, w_r, w_gate, w_up, w_down):
        B, S, D = x.shape
        C = 2
        r = x @ w_r
        idx = torch.argsort(-r, axis=-1)[:, :C]
        idx_e = (lambda x, n, axis: torch.repeat_interleave(x, n, dim=axis))(idx.reshape(B, C, 1), D, axis=2)
        x_sel = (lambda x, i, axis: torch.take_along_dim(x, i, dim=axis))(x, idx_e, axis=1)
        g = _silu(x_sel @ w_gate)
        u = x_sel @ w_up
        y = (g * u) @ w_down
        r_sel = _sigmoid((lambda x, i, axis: torch.take_along_dim(x, i, dim=axis))(r, idx, axis=1))
        y = y * r_sel.reshape(B, C, 1)
        b_off = (torch.arange(B) * S).reshape(B, 1)
        flat_idx = (idx + b_off).reshape(B * C)
        zero = (x * 0.0).reshape(B * S, D)
        upd = _scatter_add(zero, flat_idx, y.reshape(B * C, D), axis=0)
        return x + upd.reshape(B, S, D)

    x = A_x
    xn = _layernorm(x, axis=-1)
    return x + _A_ref(xn, A_wqkv, A_wo) + _B_ref(xn, B_w_r, B_w_gate, B_w_up, B_w_down)
```

```python
NAME = "parallel_sum__sliding_local_dilated__moe_arch_mod__prompt"
HEADER = open("cdna_kernels/%s.s.ref" % NAME).read().split("; Override launch")[0]

class Asm:
    def __init__(self):
        self.lines = []
        self.nlabel = 0
    def __call__(self, s, *a):
        if a: s = s % a
        for l in s.split("\n"):
            self.lines.append("    " + l.strip() if l.strip() and not l.strip().endswith(":") else l.strip())
    def label(self, name):
        self.lines.append(name + ":")
    def newlabel(self, p="L"):
        self.nlabel += 1
        return "%s_%d" % (p, self.nlabel)
    def c(self, s):
        self.lines.append("    ; " + s)
    def text(self):
        return "\n".join(self.lines) + "\n"

def kernel_begin(name):
    return ".globl %s\n.p2align 8\n.type %s,@function\n%s:\n" % (name, name, name)

def kernel_desc(name, vgpr, sgpr=102, accum=None):
    if accum is None:
        accum = min(256, (vgpr + 3) // 4 * 4)
    return (""".p2align 6
.amdhsa_kernel %s
  .amdhsa_next_free_vgpr %d
  .amdhsa_next_free_sgpr %d
  .amdhsa_accum_offset %d
  .amdhsa_group_segment_fixed_size 0
  .amdhsa_kernarg_size 88
  .amdhsa_user_sgpr_count 2
  .amdhsa_user_sgpr_kernarg_segment_ptr 1
  .amdhsa_system_sgpr_workgroup_id_x 1
  .amdhsa_float_denorm_mode_32 3
.end_amdhsa_kernel
""" % (name, vgpr, sgpr, accum))

def module(launches, kernels):
    out = HEADER
    if len(launches) == 1 and launches[0][0] == NAME + "_kernel":
        k, g, b, lds = launches[0]
        out += "; @launch grid=(%d,1,1) block=(%d,1,1) lds=%d\n" % (g, b, lds)
    else:
        for k, g, b, lds in launches:
            out += "; @launch kernel=%s grid=(%d,1,1) block=(%d,1,1) lds=%d\n" % (k, g, b, lds)
    out += '.amdgcn_target "amdgcn-amd-amdhsa--gfx950"\n.text\n'
    for k, body, v, s, a in kernels:
        out += kernel_begin(k) + body
    out += '.section .rodata,"a"\n'
    for k, body, v, s, a in kernels:
        out += kernel_desc(k, v, s, a)
    return out

def srd(a, d, base, nbytes):
    a("s_mov_b32 s%d, s%d", d, base)
    a("s_and_b32 s%d, s%d, 0xffff", d + 1, base + 1)
    a("s_mov_b32 s%d, 0x%x", d + 2, nbytes)
    a("s_mov_b32 s%d, 0x20000", d + 3)
```

```python
import re
REG = re.compile(r'^(-|abs\(|\|)?([vsa])(\d+|\[(\d+):(\d+)\])\)?\|?$')
TRANS = ("v_exp_", "v_log_", "v_rcp_", "v_rsq_", "v_sqrt_", "v_sin_", "v_cos_")
def regs_of(op):
    op = op.strip()
    if op in ("vcc", "exec", "m0", "scc"): return {op}
    if op in ("vcc_lo", "vcc_hi"): return {"vcc"}
    if op in ("exec_lo", "exec_hi"): return {"exec"}
    m = REG.match(op)
    if not m: return set()
    k = m.group(2)
    if m.group(4) is not None:
        return {"%s%d" % (k, i) for i in range(int(m.group(4)), int(m.group(5)) + 1)}
    return {"%s%d" % (k, int(m.group(3)))}
def split_ops(s):
    out, depth, cur = [], 0, ""
    for ch in s:
        if ch in "[(": depth += 1
        if ch in "])": depth -= 1
        if ch == "," and depth == 0:
            out.append(cur.strip()); cur = ""
        else: cur += ch
    if cur.strip(): out.append(cur.strip())
    return out
class I:
    pass
def parse(line):
    s = line.split(";")[0].strip()
    if not s or s.endswith(":") or s.startswith("."): return None
    parts = s.split(None, 1)
    mn = parts[0]; rest = parts[1] if len(parts) > 1 else ""
    ops = split_ops(rest)
    mods = ""
    if ops:
        last = ops[-1].split(None, 1)
        if len(last) > 1 and not last[0].endswith("("):
            ops[-1] = last[0]; mods = last[1]
    i = I(); i.mn = mn; i.ops = ops; i.mods = mods
    i.valu = mn.startswith("v_") and not mn.startswith("v_mfma")
    i.mfma = mn.startswith("v_mfma")
    i.vmem = mn.startswith(("buffer_", "global_", "flat_"))
    i.ds = mn.startswith("ds_")
    i.salu = mn.startswith("s_")
    i.trans = mn.startswith(TRANS)
    i.dpp = "_dpp" in mn or "row_" in mods or "quad_perm" in mods
    i.dot = mn.startswith("v_dot")
    i.lds_dma = i.vmem and (" lds" in (" " + mods) or "_lds_" in mn)
    R = [regs_of(o) for o in ops]
    w, r = set(), set()
    if i.mfma:
        w = R[0]; r = R[1] | R[2] | R[3]; i.ab = R[1] | R[2]; i.c = R[3]
        i.passes = 8 if "32x32x16" in mn else 4
    elif i.valu:
        if mn.startswith("v_permlane") and "swap" in mn:
            w = R[0] | R[1]; r = R[0] | R[1]
        elif mn.startswith("v_cmpx"):
            w = R[0] | {"exec"}; r = set().union(*R[1:])
        elif "_co_" in mn or mn.startswith(("v_div_scale", "v_mad_u64", "v_mad_i64")):
            w = R[0] | R[1]; r = set().union(*R[2:])
        elif mn == "v_nop": pass
        else:
            w = R[0]; r = set().union(*R[1:]) if len(R) > 1 else set()
            if mn.startswith(("v_fmac", "v_dot2c", "v_pk_fmac", "v_writelane")) or i.dpp or "sdwa" in mn: r |= R[0]
    elif i.vmem:
        if "store" in mn or "atomic" in mn or i.lds_dma or mn in ("buffer_wbl2", "buffer_inv"):
            r = set().union(*R) if R else set()
            if "atomic" in mn and "sc0" in mods: w = R[0]
        else:
            w = R[0]; r = set().union(*R[1:])
        i.wide_store = ("store" in mn) and mn.endswith(("x3", "x4"))
        if i.wide_store:
            i.sdata = R[0] if mn.startswith("buffer") else R[1]
    elif i.ds:
        if "write" in mn: r = set().union(*R)
        else: w = R[0]; r = set().union(*R[1:])
    elif i.salu:
        if mn.startswith(("s_cmp", "s_cbranch", "s_branch", "s_waitcnt", "s_barrier", "s_nop", "s_sleep", "s_endpgm", "s_setprio", "s_bitcmp")):
            r = set().union(*R) if R else set()
        else:
            w = R[0] if R else set(); r = set().union(*R[1:]) if len(R) > 1 else set()
            if "saveexec" in mn: w = w | {"exec"}
    i.w, i.r = w, r
    i.states = int(ops[0], 0) + 1 if mn == "s_nop" else 1
    return i
def sg(x): return {q for q in x if q[0] == "s" or q in ("vcc",)}
def vg(x): return {q for q in x if q[0] in "va" and q != "vcc"}
def need(p, c):
    n = 0
    if p.valu:
        pv, ps = vg(p.w), sg(p.w)
        if c.mfma and pv & c.r: n = max(n, 3 if p.dot else 2)
        if c.valu:
            if c.dpp and pv & c.r: n = max(n, 2)
            if c.mn.startswith(("v_readlane", "v_readfirstlane")) and pv & c.r: n = max(n, 1)
            if c.mn.startswith("v_permlane") and pv & c.r: n = max(n, 2)
            if p.trans and not c.trans and pv & c.r: n = max(n, 1)
            if p.trans and c.trans and pv & c.r: n = max(n, 1)
            if ps & c.r: n = max(n, 4 if c.mn.startswith(("v_readlane", "v_writelane", "v_div_fmas")) else 2)
            if "vcc" in ps and c.mn.startswith("v_div_fmas"): n = max(n, 4)
            if ("sdwa" in p.mn or ("op_sel" in p.mods and not p.mn.startswith("v_pk_"))) and pv & (c.r | c.w): n = max(n, 1)
            if p.dot and pv & (c.r | c.w) and not (c.mn == p.mn and not (pv & (c.r - c.w))): n = max(n, 3)
            if "exec" in p.w:
                if c.dpp: n = max(n, 5)
                if c.mn.startswith(("v_readlane", "v_readfirstlane", "v_writelane", "v_permlane")): n = max(n, 4)
                if "exec" in c.r: n = max(n, 2)
        if (c.vmem or c.ds) and p.dot and pv & c.r: n = max(n, 3)
        if c.vmem and ps & c.r: n = max(n, 5)
        if c.mfma and "exec" in p.w: n = max(n, 4)
        if c.salu and ps & c.r: n = max(n, 1)
        if c.mn.startswith("s_cbranch_vcc") and "vcc" in ps: n = max(n, 1)
    if p.mfma:
        big = {4: 8, 8: 12}[p.passes]; ovl = {4: 6, 8: 10}[p.passes]; war = {4: 3, 8: 7}[p.passes]
        if c.mfma:
            if p.w & c.ab: n = max(n, big)
            if p.w & c.c and not (p.w == c.c and p.passes == c.passes): n = max(n, ovl)
            if p.w & c.w and not (p.w == c.c): n = max(n, ovl)
        elif c.valu or c.vmem or c.ds:
            if p.w & (c.r | c.w): n = max(n, big)
            if c.valu and p.c & c.w: n = max(n, war)
    if p.salu and "m0" in p.w and c.lds_dma: n = max(n, 1)
    if p.vmem and getattr(p, "wide_store", False) and p.sdata & c.w: n = max(n, 2 if c.valu else 1)
    return n
def fix(text, verbose=False):
    out, hist = [], []
    added = 0
    for line in text.split("\n"):
        ins = parse(line)
        if ins is None:
            out.append(line); continue
        dist = 0; req = 0
        for p in reversed(hist):
            nd = need(p, ins)
            if nd > dist: req = max(req, nd - dist)
            dist += p.states
            if dist > 24: break
        while req > 0:
            k = min(req, 16)
            l = "    s_nop %d" % (k - 1)
            out.append(l); hist.append(parse(l)); req -= k; added += 1
        out.append(line); hist.append(ins)
        if len(hist) > 40: hist = hist[-30:]
    return "\n".join(out)
```

```python
import sys, struct
from asmlib import *
import hazard

def f32(x): return struct.unpack("<I", struct.pack("<f", x))[0]

STAT_OFF = 0x0
KEY_OFF  = 0x8000
TOP_OFF  = 0x10000
Y_OFF    = 0x20000
O_OFF    = 0x100000
STAMP_OFF = 0x8000000
WS_BYTES = 0x10000000
OOB = 0x80000000

S_X, S_WQKV, S_WS, S_WO, S_OUT, S_WR, S_G, S_U, S_D = 8, 12, 16, 20, 24, 28, 32, 36, 40
P_X, P_WQKV, P_WO, P_WR, P_G, P_U, P_D, P_OUT, P_DBG, P_WS = 64, 66, 68, 72, 74, 76, 78, 80, 82, 84
def sr(n): return "s[%d:%d]" % (n, n + 3)
def vr(n, c): return "v[%d:%d]" % (n, n + c - 1) if c > 1 else "v%d" % n

def load_ptrs(a):
    a("s_load_dwordx16 s[64:79], s[0:1], 0")
    a("s_load_dwordx4 s[80:83], s[0:1], 64")
    a("s_load_dwordx2 s[84:85], s[0:1], 80")

STAMPS = False
CYC = False
def stamp(a, i):
    if STAMPS: a("%s s[%d:%d]", "s_memtime" if CYC else "s_memrealtime", 86 + 2 * i, 87 + 2 * i)
def stamp_init(a):
    if STAMPS:
        for i in range(88, 102): a("s_mov_b32 s%d, 0", i)
def stamp_flush(a, waves, base=0):
    if not STAMPS: return
    n = len(waves)
    a("s_waitcnt lgkmcnt(0)")
    a("v_lshrrev_b32 v1, 6, v0")
    a("v_readfirstlane_b32 s60, v1")
    done = a.newlabel("ST_done")
    for k, w in enumerate(waves):
        nxt = a.newlabel("ST_n")
        a("s_cmp_lg_u32 s60, %d", w)
        a("s_cbranch_scc1 %s", nxt)
        a("s_mul_i32 s61, s2, %d", n * 64)
        a("s_add_u32 s61, s61, 0x%x", STAMP_OFF + base + k * 64)
        for i in range(16): a("v_mov_b32 v%d, s%d", 16 + i, 86 + i)
        a("v_mov_b32 v1, 0")
        a("s_mov_b64 exec, 1")
        for i in range(4):
            a("buffer_store_dwordx4 v[%d:%d], v1, %s, s61 offen offset:%d", 16 + 4 * i, 19 + 4 * i, sr(S_WS), 16 * i)
        a("s_mov_b64 exec, -1")
        a("s_branch %s", done)
        a.label(nxt)
    a.label(done)

def wave_sum(a, v, tmp_s):
    for sh in (1, 2, 4, 8):
        a("v_add_f32_dpp v%d, v%d, v%d row_shr:%d row_mask:0xf bank_mask:0xf bound_ctrl:1", v, v, v, sh)
    a("v_add_f32_dpp v%d, v%d, v%d row_bcast:15 row_mask:0xa bank_mask:0xf", v, v, v)
    a("v_add_f32_dpp v%d, v%d, v%d row_bcast:31 row_mask:0xc bank_mask:0xf", v, v, v)
    a("v_readlane_b32 s%d, v%d, 63", tmp_s, v)

def wave_umax(a, v, tmp_s):
    for sh in (1, 2, 4, 8):
        a("v_max_u32_dpp v%d, v%d, v%d row_shr:%d row_mask:0xf bank_mask:0xf bound_ctrl:1", v, v, v, sh)
    a("v_max_u32_dpp v%d, v%d, v%d row_bcast:15 row_mask:0xa bank_mask:0xf", v, v, v)
    a("v_max_u32_dpp v%d, v%d, v%d row_bcast:31 row_mask:0xc bank_mask:0xf", v, v, v)
    a("v_readlane_b32 s%d, v%d, 63", tmp_s, v)

def rpass_issue(a, vlane, s_row, vx, vw, vt, st):
    a("v_lshlrev_b32 v%d, 2, v%d", vt, vlane)
    a("s_mul_i32 s%d, s%d, 1280", st, s_row)
    for j in range(5):
        a("buffer_load_dword v%d, v%d, %s, s%d offen offset:%d", vx + j, vt, sr(S_X), st, 256 * j)
    for j in range(5):
        a("buffer_load_dword v%d, v%d, %s, 0 offen offset:%d", vw + j, vt, sr(S_WR), 256 * j)

def rpass_compute(a, vx, vw, vf, vt, st, s_mask):
    for j in range(5):
        a("v_lshlrev_b32 v%d, 16, v%d", vf + 2 * j, vx + j)
        a("v_and_b32 v%d, s%d, v%d", vf + 2 * j + 1, s_mask, vx + j)
    a("v_add_f32 v%d, v%d, v%d", vt, vf, vf + 1)
    for j in range(2, 10):
        a("v_add_f32 v%d, v%d, v%d", vt, vt, vf + j)
    wave_sum(a, vt, st)
    a("v_mov_b32 v%d, 0x%x", vt + 1, f32(1.0 / 640))
    a("v_mul_f32 v%d, s%d, v%d", vt + 2, st, vt + 1)
    a("v_sub_f32 v%d, v%d, v%d", vt + 3, vf, vt + 2)
    a("v_mul_f32 v%d, v%d, v%d", vt, vt + 3, vt + 3)
    for j in range(1, 10):
        a("v_sub_f32 v%d, v%d, v%d", vt + 3, vf + j, vt + 2)
        a("v_fmac_f32 v%d, v%d, v%d", vt, vt + 3, vt + 3)
    wave_sum(a, vt, st)
    a("v_mul_f32 v%d, s%d, v%d", vt, st, vt + 1)
    a("v_cvt_pk_bf16_f32 v%d, v%d, v%d", vt + 2, vt + 2, vt)
    a("v_and_b32 v%d, s%d, v%d", vt, s_mask, vt + 2)
    a("v_add_f32 v%d, 0x%x, v%d", vt, f32(1e-5), vt)
    a("v_cvt_pk_bf16_f32 v%d, v%d, v%d", vt, vt, vt)
    a("v_and_b32 v%d, s%d, v%d", vt, s_mask, vt)
    a("v_sqrt_f32 v%d, v%d", vt, vt)
    a("v_cvt_pk_bf16_f32 v%d, v%d, v%d", vt, vt, vt)
    a("v_and_b32 v%d, s%d, v%d", vt, s_mask, vt)
    a("v_rcp_f32 v%d, v%d", vt + 3, vt)
    a("v_lshlrev_b32 v%d, 16, v%d", vt + 1, vt + 2)
    a("v_bfi_b32 v%d, s%d, v%d, v%d", vt, s_mask, vt, vt + 2)
    for j in range(10):
        a("v_sub_f32 v%d, v%d, v%d", vf + j, vf + j, vt + 1)
    for j in range(5):
        a("v_cvt_pk_bf16_f32 v%d, v%d, v%d", vx + j, vf + 2 * j, vf + 2 * j + 1)
    for j in range(5):
        a("v_lshlrev_b32 v%d, 16, v%d", vf + 2 * j, vx + j)
        a("v_and_b32 v%d, s%d, v%d", vf + 2 * j + 1, s_mask, vx + j)
    for j in range(10):
        a("v_mul_f32 v%d, v%d, v%d", vf + j, vf + j, vt + 3)
    for j in range(5):
        a("v_cvt_pk_bf16_f32 v%d, v%d, v%d", vx + j, vf + 2 * j, vf + 2 * j + 1)
    a("v_mov_b32 v%d, 0", vt + 1)
    for j in range(5):
        a("v_dot2c_f32_bf16 v%d, v%d, v%d", vt + 1, vx + j, vw + j)
    wave_sum(a, vt + 1, st)
    a("v_mov_b32 v%d, s%d", vt + 1, st)
    a("v_cvt_pk_bf16_f32 v%d, v%d, v%d", vt + 1, vt + 1, vt + 1)

def k0_body():
    a = Asm()
    a("s_cmp_ge_u32 s2, 256")
    a("s_cbranch_scc1 K0_end")
    load_ptrs(a)
    a("v_lshrrev_b32 v1, 6, v0")
    a("v_and_b32 v2, 63, v0")
    a("v_readfirstlane_b32 s3, v1")
    a("s_lshl_b32 s4, s2, 3")
    a("s_add_u32 s4, s4, s3")
    a("s_mov_b32 s7, 0xffff0000")
    a("s_waitcnt lgkmcnt(0)")
    srd(a, S_X, P_X, 2048 * 1280)
    srd(a, S_WR, P_WR, 1280)
    srd(a, S_WS, P_WS, WS_BYTES)
    rpass_issue(a, 2, 4, 10, 16, 3, 5)
    a("s_waitcnt vmcnt(0)")
    rpass_compute(a, 10, 16, 24, 36, 5, 7)
    a("s_and_b32 s5, s4, 1")
    a("s_lshl_b32 s5, s5, 10")
    a("s_lshr_b32 s6, s4, 1")
    a("s_add_u32 s5, s5, s6")
    a("v_lshlrev_b32 v37, 16, v37")
    a("v_ashrrev_i32 v38, 31, v37")
    a("v_or_b32 v38, 0x80000000, v38")
    a("v_xor_b32 v37, v37, v38")
    a("v_and_b32 v37, s7, v37")
    a("v_or_b32 v40, s5, v37")
    a("v_mov_b32 v37, 0")
    a("v_mov_b32 v41, 0")
    a("s_lshl_b32 s6, s5, 3")
    a("v_mov_b32 v3, s6")
    a("v_cmp_eq_u32 vcc, 0, v2")
    a("s_and_saveexec_b64 s[44:45], vcc")
    a("buffer_store_dwordx2 v[36:37], v3, %s, 0 offen", sr(S_WS))
    a("s_mov_b32 s6, 0x%x", KEY_OFF)
    a("buffer_store_dwordx2 v[40:41], v3, %s, s6 offen", sr(S_WS))
    a.label("K0_end")
    a("s_endpgm")
    return a


SLOT = 45056
XOFF = 32768
L_VT = 135168
L_KH = 153600
L_CS = 157696
L_ST = 158720
L_OST = 0
LDS1 = 159744
NEG = f32(-1e30)
CEXP = f32((20 ** -0.5) * 1.4426950408889634)

def lane_masks():
    VB, VP = [], []
    for r in range(4):
        b = p = 0
        for l in range(64):
            tok, g = l & 15, l >> 4
            kk = 4 * g + r
            if 0 <= tok - kk <= 7: b |= 1 << l
            if kk >= tok + 9: p |= 1 << l
        VB.append(b); VP.append(p)
    return VB, VP

def smov64(a, s, val):
    a("s_mov_b32 s%d, 0x%x", s, val & 0xffffffff)
    a("s_mov_b32 s%d, 0x%x", s + 1, val >> 32)

def p1_decode(a):
    a("s_and_b32 s4, s2, 7")
    a("s_lshr_b32 s5, s2, 3")
    a("s_and_b32 s44, s4, 1")
    a("s_lshl_b32 s44, s44, 2")
    a("s_and_b32 s6, s5, 3")
    a("s_add_u32 s44, s44, s6")
    a("s_lshr_b32 s49, s4, 1")
    a("s_mul_i32 s49, s49, 6")
    a("s_lshr_b32 s50, s5, 2")
    a("s_add_u32 s49, s49, s50")
    a("s_cmp_ge_u32 s49, 12")
    a("s_cselect_b32 s45, 1, 0")
    a("s_mul_i32 s51, s45, 12")
    a("s_sub_u32 s49, s49, s51")
    a("s_mul_i32 s46, s49, 88")
    a("s_mul_i32 s50, s50, 427")
    a("s_mul_i32 s51, s6, 640")
    a("s_add_u32 s50, s50, s51")
    a("s_lshr_b32 s47, s50, 8")
    a("s_cmp_ge_u32 s47, 10")
    a("s_cselect_b32 s50, 10, 0")
    a("s_sub_u32 s47, s47, s50")

def p1_loader(a, rot=True):
    if not rot: a("s_mov_b32 s47, 0")
    a("v_lshrrev_b32 v3, 3, v2")
    a("s_lshl_b32 s6, s3, 3")
    a("v_add_u32 v3, s6, v3")
    a("v_lshrrev_b32 v4, 1, v3")
    a("v_xor_b32 v4, v4, v2")
    a("v_and_b32 v4, 7, v4")
    a("v_lshlrev_b32 v4, 4, v4")
    a("s_mul_i32 s6, s45, 1280")
    a("v_add_u32 v4, s6, v4")
    a("s_sub_u32 s6, s46, 8")
    a("v_add_u32 v3, s6, v3")
    a("s_movk_i32 s49, 2560")
    a("v_mov_b32 v7, 0x%x", OOB)
    for n in range(3):
        a("v_add_u32 v5, %d, v3", 32 * n)
        a("v_mad_u32_u24 v%d, v5, s49, v4", 10 + n)
        a("v_cmp_gt_u32 vcc, 1024, v5")
        a("v_cndmask_b32 v%d, v7, v%d, vcc", 10 + n, 10 + n)
    a("s_and_b32 s50, s3, 1")
    a("s_lshr_b32 s51, s3, 1")
    a("s_lshl_b32 s52, s51, 2")
    a("s_add_u32 s52, s52, s50")
    a("s_add_u32 s53, s52, s50")
    a("v_lshrrev_b32 v3, 5, v2")
    a("v_add_u32 v4, s53, v3")
    a("v_lshlrev_b32 v4, 1, v4")
    a("v_sub_u32 v4, v2, v4")
    a("v_and_b32 v4, 31, v4")
    a("v_mul_u32_u24 v5, 47, v4")
    a("v_lshrrev_b32 v5, 9, v5")
    a("v_mul_u32_u24 v6, 11, v5")
    a("v_sub_u32 v6, v4, v6")
    a("v_mul_u32_u24 v5, 1280, v5")
    a("v_lshl_add_u32 v5, v6, 4, v5")
    a("s_lshl_b32 s53, s52, 1")
    a("v_add_u32 v3, s53, v3")
    a("v_mul_u32_u24 v3, 3840, v3")
    a("s_mul_i32 s53, s44, 160")
    a("v_add3_u32 v13, v3, v5, s53")
    a("v_cmp_gt_u32 vcc, 10, v6")
    a("v_cndmask_b32 v13, v7, v13, vcc")
    a("v_lshlrev_b32 v3, 1, v2")
    a("s_sub_u32 s6, s46, 8")
    a("v_add_u32 v3, s6, v3")
    a("s_lshl_b32 s6, s45, 10")
    a("v_add_lshl_u32 v14, v3, s6, 3")
    a("v_cmp_gt_u32 vcc, 1024, v3")
    a("v_cndmask_b32 v14, v7, v14, vcc")
    a("s_lshl_b32 s54, s3, 10")
    a("s_add_u32 s54, s54, %d", XOFF)
    a("s_lshl_b32 s55, s52, 10")
    a("s_cmp_eq_u32 s3, 0")
    a("s_cselect_b32 s56, 0xffffff00, -1")
    a("s_mov_b32 s57, -1")
    def issue():
        a("s_lshl_b32 s49, s47, 7")
        a("s_add_u32 s50, s48, s54")
        for n in range(3):
            a("s_mov_b32 m0, s50")
            if n == 0: a("s_mov_b64 exec, s[56:57]")
            else: a("s_nop 0")
            a("buffer_load_dwordx4 v%d, %s, s49 offen lds", 10 + n, sr(S_X))
            if n == 0: a("s_mov_b64 exec, -1")
            a("s_add_u32 s50, s50, 4096")
        a("s_mul_i32 s49, s47, %d", 64 * 3840)
        a("s_add_u32 s50, s48, s55")
        for ks in range(2):
            for di in (0, 2, 8, 10):
                a("s_add_u32 m0, s50, %d", ks * 16384 + di * 1024)
                a("s_add_u32 s51, s49, %d", (ks * 32 + 2 * di) * 3840)
                a("buffer_load_dwordx4 v13, %s, s51 offen lds", sr(S_WQKV))
        a("s_add_u32 s47, s47, 1")
        a("s_cmp_ge_u32 s47, 10")
        a("s_cselect_b32 s47, 0, s47")
        a("s_add_u32 s48, s48, %d", SLOT)
        a("s_cmp_ge_u32 s48, %d", 3 * SLOT)
        a("s_cselect_b32 s48, 0, s48")
    a("s_mov_b32 s48, 0")
    a("s_mov_b32 s58, 0")
    a.label("P1L_pro")
    issue()
    a("s_add_u32 s58, s58, 1")
    a("s_cmp_lt_u32 s58, 3")
    a("s_cbranch_scc1 P1L_pro")
    stamp(a, 1)
    a("s_waitcnt vmcnt(22)")
    stamp(a, 2)
    a("s_barrier")
    a("s_mov_b32 s58, 1")
    a.label("P1L_loop")
    a("s_waitcnt vmcnt(11)")
    a("s_barrier")
    issue()
    a("s_add_u32 s58, s58, 1")
    a("s_cmp_lt_u32 s58, 8")
    a("s_cbranch_scc1 P1L_loop")
    a("s_mov_b32 m0, %d", L_ST)
    a("s_nop 0")
    a("buffer_load_dwordx4 v14, %s, 0 offen sc1 lds", sr(S_WS))
    stamp(a, 3)
    a("s_waitcnt vmcnt(12)")
    a("s_barrier")
    a("s_waitcnt vmcnt(1)")
    stamp(a, 4)
    a("s_barrier")
    a("s_waitcnt vmcnt(0)")
    stamp(a, 5)
    a("s_barrier")
    a("s_barrier")
    a("s_barrier")

ACC = 16
WF = 64
XF = 96
VA = 120
def acc(m, T): return ACC + (m * 4 + T) * 4

def p1_compute(a):
    a("s_and_b32 s49, s3, 3")
    a("s_lshr_b32 s50, s3, 2")
    a("v_lshrrev_b32 v3, 4, v2")
    a("v_bfe_u32 v4, v2, 2, 2")
    a("v_and_b32 v5, 3, v2")
    a("v_and_b32 v6, 15, v2")
    a("s_cmp_ge_u32 s3, 3")
    a("s_cbranch_scc1 P1C_noones")
    a("s_mul_i32 s51, s3, %d", SLOT)
    a("s_add_u32 s51, s51, %d", XOFF)
    a("v_lshl_add_u32 v7, v2, 4, s51")
    for i in range(4): a("v_mov_b32 v%d, 0x3f803f80", 8 + i)
    a("s_mov_b64 exec, 0xff")
    a("ds_write_b128 v7, v[8:11]")
    a("s_mov_b64 exec, -1")
    a.label("P1C_noones")
    a("v_and_b32 v7, 1, v3")
    a("v_lshl_add_u32 v7, v7, 2, v4")
    a("v_lshlrev_b32 v7, 2, v7")
    a("v_lshl_add_u32 v8, v3, 3, v4")
    a("v_lshlrev_b32 v8, 9, v8")
    a("s_mul_i32 s51, s49, 5")
    a("v_add_u32 v7, s51, v7")
    a("v_mov_b32 v9, v5")
    a("v_add_u32 v10, 22, v5")
    a("v_add_u32 v11, 44, v5")
    a("v_cmp_eq_u32 vcc, 0, v5")
    a("v_cndmask_b32 v11, v11, 4, vcc")
    a("v_lshlrev_b32 v12, 2, v5")
    a("v_add_u32 v12, 40, v12")
    a("v_cndmask_b32 v12, v12, 26, vcc")
    a("s_and_b32 s52, s49, 1")
    a("s_sub_u32 s52, 21, s52")
    a("s_sub_u32 s52, s52, s51")
    a("v_mov_b32 v13, s52")
    a("v_cmp_eq_u32 vcc, 3, v5")
    a("v_cndmask_b32 v12, v12, v13, vcc")
    for T in range(4):
        a("v_add_u32 v13, v%d, v7", 9 + T)
        a("v_and_b32 v13, 63, v13")
        a("v_lshl_add_u32 v%d, v13, 3, v8", VA + T)
    a("v_lshrrev_b32 v7, 1, v6")
    a("v_xor_b32 v7, v7, v3")
    a("v_lshlrev_b32 v7, 4, v7")
    a("v_lshl_add_u32 v7, v6, 7, v7")
    a("s_mul_i32 s51, s50, %d", 48 * 128)
    a("s_add_u32 s51, s51, %d", XOFF)
    a("v_add_u32 v%d, s51, v7", VA + 4)
    a("v_xor_b32 v%d, 64, v%d", VA + 5, VA + 4)
    for i in range(48): a("v_mov_b32 v%d, 0", ACC + i)
    CUR = VA + 6
    def reads(ks):
        for T in range(4):
            for h in range(2):
                a("ds_read_b64_tr_b16 %s, v%d offset:%d", vr(WF + ks * 16 + T * 4 + h * 2, 2), CUR + T, ks * 16384 + h * 2048)
        for m in range(3):
            a("ds_read_b128 %s, v%d offset:%d", vr(XF + ks * 12 + m * 4, 4), CUR + 4 + ks, m * 2048)
    def mfmas(ks):
        for m in range(3):
            for T in range(4):
                a("v_mfma_f32_16x16x32_bf16 %s, %s, %s, %s", vr(acc(m, T), 4), vr(WF + ks * 16 + T * 4, 4), vr(XF + ks * 12 + m * 4, 4), vr(acc(m, T), 4))
    for i in range(16): a("v_mov_b32 v%d, 0", WF + 16 + i)
    for i in range(12): a("v_mov_b32 v%d, 0", XF + 12 + i)
    a("s_mov_b32 s48, 0")
    a("s_mov_b32 s58, 0")
    a("s_waitcnt lgkmcnt(0)")
    stamp(a, 1)
    a.label("P1C_loop")
    for i in range(6): a("v_add_u32 v%d, s48, v%d", CUR + i, VA + i)
    a("s_barrier")
    reads(0)
    mfmas(1)
    a("s_waitcnt lgkmcnt(0)")
    reads(1)
    mfmas(0)
    a("s_add_u32 s48, s48, %d", SLOT)
    a("s_cmp_ge_u32 s48, %d", 3 * SLOT)
    a("s_cselect_b32 s48, 0, s48")
    a("s_add_u32 s58, s58, 1")
    a("s_cmp_lt_u32 s58, 10")
    a("s_waitcnt lgkmcnt(0)")
    a("s_cbranch_scc1 P1C_loop")
    mfmas(1)
    stamp(a, 2)
    a("s_lshl_b32 s51, s49, 8")
    a("s_add_u32 s51, s51, %d", L_CS)
    a("v_lshl_add_u32 v7, v3, 4, s51")
    a("s_cmp_lg_u32 s50, 0")
    a("s_cbranch_scc1 P1C_nocs")
    smov64(a, 52, 0x0001000100010001)
    a("s_mov_b64 exec, s[52:53]")
    for T in range(4):
        a("ds_write_b128 v7, %s offset:%d", vr(acc(0, T), 4), T * 64)
    a("s_mov_b64 exec, -1")
    a.label("P1C_nocs")
    VB, VP = lane_masks()
    BB, BP, B0 = 64, 68, 72
    MB = 76
    a("v_mov_b32 v8, 0x%x", NEG)
    a("s_cmp_eq_u32 s46, 0")
    a("s_cselect_b32 s54, 1, 0")
    a("s_cmp_eq_u32 s50, 0")
    a("s_cselect_b32 s54, s54, 0")
    for r in range(4):
        smov64(a, 52, VB[r])
        a("v_cndmask_b32 v%d, v8, 0, s[52:53]", BB + r)
        if r % 2 == 0: a("v_cndmask_b32 v%d, 0, v9, s[52:53]" % (MB + r // 2) if False else "v_mov_b32 v9, 0xffff")
        if r % 2 == 0: a("v_cndmask_b32 v%d, 0, v9, s[52:53]", MB + r // 2)
        else:
            a("v_mov_b32 v9, s7")
            a("v_cndmask_b32 v10, 0, v9, s[52:53]")
            a("v_or_b32 v%d, v%d, v10", MB + r // 2, MB + r // 2)
        a("s_cmp_eq_u32 s54, 1")
        a("s_cselect_b32 s52, 0, s52")
        a("v_cndmask_b32 v%d, v8, 0, s[52:53]", B0 + r)
        smov64(a, 52, VP[r])
        a("v_cndmask_b32 v%d, v8, 0, s[52:53]", BP + r)
    ONES = 80
    for i in range(4): a("v_mov_b32 v%d, 0x3f803f80", ONES + i)
    a("s_mul_i32 s51, s50, %d", 48 * 8)
    a("s_add_u32 s51, s51, %d", L_ST)
    a("v_lshl_add_u32 v8, v6, 3, s51")
    a("s_waitcnt lgkmcnt(0)")
    a("s_barrier")
    stamp(a, 3)
    CS = 96
    STT = 112
    for T in range(4):
        a("ds_read_b128 %s, v7 offset:%d", vr(CS + T * 4, 4), T * 64)
    for m in range(3):
        a("ds_read_b64 %s, v8 offset:%d", vr(STT + 2 * m, 2), m * 128)
    a("s_mul_i32 s51, s49, 4608")
    a("s_mul_i32 s52, s50, %d", 48 * 48)
    a("s_add_u32 s51, s51, s52")
    a("s_add_u32 s55, s51, %d", L_VT)
    a("v_mul_u32_u24 v9, 48, v6")
    a("v_lshl_add_u32 v9, v3, 4, v9")
    a("s_sub_u32 s51, s55, 16")
    a("v_add_u32 v9, s51, v9")
    a("s_lshl_b32 s51, s49, 10")
    a("s_add_u32 s51, s51, %d", L_KH)
    a("v_lshl_add_u32 v10, v2, 4, s51")
    a("s_waitcnt lgkmcnt(0)")
    for m in range(3):
        st = STT + 2 * m
        a("v_and_b32 v%d, s7, v%d", st + 1, st)
        a("v_max_f32 v%d, 0x%x, v%d", st + 1, f32(1e-3), st + 1)
        a("v_rcp_f32 v%d, v%d", st + 1, st + 1)
        a("v_lshlrev_b32 v%d, 16, v%d", st, st)
    QF, KF, KP, T2 = 120, 136, 132, 148
    smov64(a, 52, 0xffff)
    for m in range(3):
        st = STT + 2 * m
        for T in range(4):
            for h in range(2):
                r = acc(m, T) + 2 * h
                a("v_pk_fma_f32 %s, %s, %s, %s op_sel_hi:[0,1,1] neg_lo:[1,0,0] neg_hi:[1,0,0]", vr(r, 2), vr(st, 2), vr(CS + T * 4 + 2 * h, 2), vr(r, 2))
        for T in range(4):
            for h in range(2):
                r = acc(m, T) + 2 * h
                a("v_pk_mul_f32 %s, %s, %s op_sel:[0,1]", vr(r, 2), vr(r, 2), vr(st, 2))
        dst = {0: QF + 4 * m, 1: KF + 4 * m, 2: T2 + 2 * m, 3: KF + 4 * m + 2}
        for T in range(4):
            for h in range(2):
                a("v_cvt_pk_bf16_f32 v%d, v%d, v%d", dst[T] + h, acc(m, T) + 2 * h, acc(m, T) + 2 * h + 1)
        for h in range(2):
            a("v_cndmask_b32 v%d, 0, v%d, s[52:53]", QF + 4 * m + 2 + h, T2 + 2 * m + h)
    a("s_mov_b32 s52, 0xffff0000")
    a("s_mov_b32 s53, -1")
    a("s_mov_b64 exec, s[52:53]")
    for m in range(3):
        a("ds_write2_b64 v9, %s, %s offset0:%d offset1:%d", vr(T2 + 2 * m, 2), vr(KF + 4 * m + 2, 2), m * 96, m * 96 + 1)
    a("s_mov_b64 exec, -1")
    a("s_cmp_lg_u32 s50, 0")
    a("s_cbranch_scc1 P1C_nokh")
    a("ds_write_b128 v10, %s", vr(KF + 8, 4))
    a.label("P1C_nokh")
    SB = lambda m: 16 + 8 * m
    SP = lambda m: 20 + 8 * m
    for m in range(3):
        a("v_mfma_f32_16x16x32_bf16 %s, %s, %s, %s", vr(SB(m), 4), vr(KF + 4 * m, 4), vr(QF + 4 * m, 4), vr(B0 if m == 0 else BB, 4))
    for m in (1, 2):
        a("v_mfma_f32_16x16x32_bf16 %s, %s, %s, %s", vr(SP(m), 4), vr(KF + 4 * m - 4, 4), vr(QF + 4 * m, 4), vr(BP, 4))
    a("v_lshl_add_u32 v11, v3, 2, v4")
    a("v_mul_u32_u24 v11, 48, v11")
    a("v_add_u32 v11, s55, v11")
    a("v_lshlrev_b32 v12, 2, v5")
    a("v_mov_b32 v13, 0x4201")
    a("v_bfe_u32 v13, v13, v12, 4")
    a("v_lshl_add_u32 v13, v13, 3, v11")
    a("v_mov_b32 v14, 0x5553")
    a("v_bfe_u32 v14, v14, v12, 4")
    a("v_lshl_add_u32 v14, v14, 3, v11")
    a("s_mul_i32 s51, s50, 768")
    a("v_subrev_u32 v11, s51, v13")
    a("v_subrev_u32 v12, s51, v14")
    a("s_waitcnt lgkmcnt(0)")
    a("s_barrier")
    stamp(a, 4)
    VT0, VT1 = 96, 104
    a("ds_read_b128 %s, v10", vr(KP, 4))
    a("ds_read_b64_tr_b16 %s, v11", vr(VT0, 2))
    a("ds_read_b64_tr_b16 %s, v12", vr(VT1, 2))
    for m in range(3):
        a("ds_read_b64_tr_b16 %s, v13 offset:%d", vr(VT0 + 2 + 2 * m, 2), m * 768)
        a("ds_read_b64_tr_b16 %s, v14 offset:%d", vr(VT1 + 2 + 2 * m, 2), m * 768)
    a("s_waitcnt lgkmcnt(8)")
    a("v_mfma_f32_16x16x32_bf16 %s, %s, %s, %s", vr(SP(0), 4), vr(KP, 4), vr(QF, 4), vr(BP, 4))
    a("s_mov_b32 s52, 0x%x", CEXP)
    order = (1, 2, 0)
    MX, TM = 40, 44
    for m in order:
        for r in range(4): a("v_max_f32 v%d, v%d, v%d", SB(m) + r, SB(m) + r, SP(m) + r)
    for m in order:
        a("v_max3_f32 v%d, v%d, v%d, v%d", MX + m, SB(m), SB(m) + 1, SB(m) + 2)
        a("v_max_f32 v%d, v%d, v%d", MX + m, MX + m, SB(m) + 3)
    for swap in ("v_permlane32_swap_b32", "v_permlane16_swap_b32"):
        for m in order: a("v_mov_b32 v%d, v%d", TM + m, MX + m)
        for m in order: a("%s v%d, v%d", swap, MX + m, TM + m)
        for m in order: a("v_max_f32 v%d, v%d, v%d", MX + m, MX + m, TM + m)
    for m in order: a("v_mul_f32 v%d, s52, v%d", MX + m, MX + m)
    for m in order:
        for r in range(4): a("v_fma_f32 v%d, v%d, s52, -v%d", SB(m) + r, SB(m) + r, MX + m)
    for m in order:
        for r in range(4): a("v_exp_f32 v%d, v%d", SB(m) + r, SB(m) + r)
    for m in order:
        for h in range(2):
            a("v_cvt_pk_bf16_f32 v%d, v%d, v%d", SP(m) + h, SB(m) + 2 * h, SB(m) + 2 * h + 1)
        for h in range(2):
            a("v_and_b32 v%d, v%d, v%d", SP(m) + 2 + h, SP(m) + h, MB + h)
        for h in range(2):
            a("v_xor_b32 v%d, v%d, v%d", SP(m) + h, SP(m) + h, SP(m) + 2 + h)
    a("s_waitcnt lgkmcnt(0)")
    O0 = lambda m: 120 + 12 * m
    O1 = lambda m: 124 + 12 * m
    OS = lambda m: 128 + 12 * m
    for m in order:
        a("v_mfma_f32_16x16x32_bf16 %s, %s, %s, 0", vr(OS(m), 4), vr(ONES, 4), vr(SP(m), 4))
        a("v_mfma_f32_16x16x32_bf16 %s, %s, %s, 0", vr(O0(m), 4), vr(VT0 + 2 * m, 4), vr(SP(m), 4))
        a("v_mfma_f32_16x16x32_bf16 %s, %s, %s, 0", vr(O1(m), 4), vr(VT1 + 2 * m, 4), vr(SP(m), 4))
    a("s_mul_i32 s51, s50, %d", 48 * 160)
    a("s_mul_i32 s52, s49, 40")
    a("s_add_u32 s51, s51, s52")
    a("v_mul_u32_u24 v9, 160, v6")
    a("v_lshl_add_u32 v9, v3, 3, v9")
    a("v_add_u32 v9, s51, v9")
    for m in order:
        a("v_rcp_f32 v%d, v%d", OS(m), OS(m))
    for m in order:
        for b in (O0(m), O0(m) + 2, O1(m), O1(m) + 2):
            a("v_pk_mul_f32 %s, %s, %s op_sel_hi:[1,0]", vr(b, 2), vr(b, 2), vr(OS(m), 2))
        for b in (O0(m), O1(m)):
            a("v_cvt_pk_bf16_f32 v%d, v%d, v%d", b, b, b + 1)
            a("v_cvt_pk_bf16_f32 v%d, v%d, v%d", b + 1, b + 2, b + 3)
        a("ds_write_b64 v9, %s offset:%d", vr(O0(m), 2), L_OST + m * 2560)
    a("s_mov_b64 exec, 0xffff")
    for m in order:
        a("ds_write_b64 v9, %s offset:%d", vr(O1(m), 2), L_OST + m * 2560 + 32)
    a("s_mov_b64 exec, -1")
    a("s_waitcnt lgkmcnt(0)")
    stamp(a, 5)
    a("s_barrier")

def p1_ostore(a):
    a("v_lshlrev_b32 v3, 4, v0")
    a("ds_read_b128 v[4:7], v3 offset:%d", L_OST + 1280)
    a("ds_read_b128 v[8:11], v3 offset:%d", L_OST + 1280 + 12288)
    a("s_sub_u32 s49, 1024, s46")
    a("s_min_u32 s49, s49, 88")
    a("s_mul_i32 s49, s49, 160")
    a("s_lshl_b32 s50, s45, 10")
    a("s_add_u32 s50, s50, s46")
    a("s_mul_i32 s50, s50, 160")
    a("s_mul_i32 s51, s44, %d", 2048 * 160)
    a("s_add_u32 s50, s50, s51")
    a("s_add_u32 s50, s50, 0x%x", O_OFF)
    a("v_mov_b32 v13, 0x%x", OOB)
    a("v_add_u32 v12, 12288, v3")
    a("v_cmp_gt_u32 vcc, s49, v3")
    a("v_cndmask_b32 v3, v13, v3, vcc")
    a("v_cmp_gt_u32 vcc, s49, v12")
    a("v_cndmask_b32 v12, v13, v12, vcc")
    a("s_waitcnt lgkmcnt(1)")
    a("buffer_store_dwordx4 v[4:7], v3, %s, s50 offen", sr(S_WS))
    a("s_waitcnt lgkmcnt(0)")
    a("buffer_store_dwordx4 v[8:11], v12, %s, s50 offen", sr(S_WS))


F_TOP = 0
F_P1 = 1024
F_H = 12288
F_P2 = 16384
LOG2E = f32(1.4426950408889634)

def norm8(a, src, dst, tmp, vm, vrs, s_mask):
    for q in range(4):
        a("v_lshlrev_b32 v%d, 16, v%d", tmp + 2 * q, src + q)
        a("v_and_b32 v%d, s%d, v%d", tmp + 2 * q + 1, s_mask, src + q)
    for q in range(8): a("v_sub_f32 v%d, v%d, v%d", tmp + q, tmp + q, vm)
    for q in range(4): a("v_cvt_pk_bf16_f32 v%d, v%d, v%d", dst + q, tmp + 2 * q, tmp + 2 * q + 1)
    for q in range(4):
        a("v_lshlrev_b32 v%d, 16, v%d", tmp + 2 * q, dst + q)
        a("v_and_b32 v%d, s%d, v%d", tmp + 2 * q + 1, s_mask, dst + q)
    for q in range(8): a("v_mul_f32 v%d, v%d, v%d", tmp + q, tmp + q, vrs)
    for q in range(4): a("v_cvt_pk_bf16_f32 v%d, v%d, v%d", dst + q, tmp + 2 * q, tmp + 2 * q + 1)

def perm_unit(a, src, dst, s_lo, s_hi):
    for q in range(4):
        for h in range(2):
            for p in range(4):
                a("v_perm_b32 v%d, v%d, v%d, s%d", dst + 4 * (2 * q + h) + p, src + 4 * (2 * p + 1) + q, src + 4 * (2 * p) + q, s_hi if h else s_lo)

def bf16r(a, v, s_mask):
    a("v_cvt_pk_bf16_f32 v%d, v%d, v%d", v, v, v)
    a("v_and_b32 v%d, s%d, v%d", v, s_mask, v)

def ffn_role(a):
    a("s_sub_u32 s44, s5, 24")
    a("s_lshl_b32 s44, s44, 3")
    a("s_add_u32 s44, s44, s4")
    srd(a, S_D, P_D, 1536 * 1280)
    a("v_lshrrev_b32 v3, 4, v2")
    a("v_and_b32 v6, 15, v2")
    a("s_mov_b32 s46, 0x05040100")
    a("s_mov_b32 s47, 0x07060302")
    a("s_cmp_ge_u32 s3, 10")
    a("s_cbranch_scc1 FF_top")
    B0, B1, B2, B3 = 32, 64, 96, 128
    a("v_cmp_gt_u32 vcc, 8, v6")
    a("v_mov_b32 v8, s%d", P_U); a("v_mov_b32 v9, s%d", P_U + 1)
    a("v_mov_b32 v10, s%d", P_G); a("v_mov_b32 v11, s%d", P_G + 1)
    a("v_cndmask_b32 v8, v8, v10, vcc")
    a("v_cndmask_b32 v9, v9, v11, vcc")
    a("s_lshl_b32 s48, s3, 6")
    a("v_lshl_add_u32 v10, v3, 3, s48")
    a("v_mul_u32_u24 v10, 3072, v10")
    a("v_and_b32 v11, 7, v6")
    a("v_lshl_add_u32 v10, v11, 4, v10")
    a("s_lshl_b32 s48, s44, 7")
    a("v_add_u32 v10, s48, v10")
    a("v_add_co_u32 v8, vcc, v8, v10")
    a("v_addc_co_u32 v9, vcc, 0, v9, vcc")
    for u in range(2):
        for jp in range(4):
            for h in range(2):
                a("global_load_dwordx4 %s, v[8:9], off offset:%d", vr((B1, B2)[u] + 4 * (2 * jp + h), 4), 3072 * h)
            if not (u == 1 and jp == 3):
                step = 6144 if jp < 3 else 6144 + 24 * 3072
                a("v_add_co_u32 v8, vcc, 0x%x, v8", step)
                a("v_addc_co_u32 v9, vcc, 0, v9, vcc")
    a("s_cmp_ge_u32 s3, 5")
    a("s_cselect_b32 s49, 1, 0")
    a("s_mul_i32 s48, s49, 5")
    a("s_sub_u32 s48, s3, s48")
    a("s_lshl_b32 s50, s44, 6")
    a("s_lshl_b32 s51, s49, 5")
    a("s_add_u32 s50, s50, s51")
    a("s_mul_i32 s50, s50, 1280")
    a("s_lshl_b32 s51, s48, 8")
    a("s_add_u32 s50, s50, s51")
    a("s_add_u32 s51, s50, 5120")
    a("v_mul_u32_u24 v10, %d, v3", 8 * 1280)
    a("v_lshl_add_u32 v10, v6, 4, v10")
    for j in range(8):
        a("buffer_load_dwordx4 %s, v10, %s, s%d offen offset:%d", vr(B3 + 4 * j, 4), sr(S_D), 50 + j // 4, (j % 4) * 1280)
    a("s_waitcnt vmcnt(16)")
    perm_unit(a, B1, B0, 46, 47)
    a("s_waitcnt vmcnt(8)")
    perm_unit(a, B2, B1, 46, 47)
    a("s_waitcnt vmcnt(0)")
    perm_unit(a, B3, B2, 46, 47)
    a("s_branch FF_b1")
    a.label("FF_top")
    a("s_cmp_lg_u32 s3, 10")
    a("s_cbranch_scc1 FF_b1")
    a("v_lshlrev_b32 v8, 4, v2")
    a("s_mov_b32 s48, 0x%x", KEY_OFF)
    for i in range(16):
        if i % 4 == 0 and i: a("s_add_u32 s48, s48, 4096")
        a("buffer_load_dwordx4 %s, v8, %s, s48 offen offset:%d sc1", vr(32 + 4 * i, 4), sr(S_WS), (i % 4) * 1024)
    a("v_mov_b32 v10, 0"); a("v_mov_b32 v11, 0")
    a("s_waitcnt vmcnt(0)")
    for i in range(32):
        a("v_med3_u32 v11, v10, v11, v%d", 32 + 2 * i)
        a("v_max_u32 v10, v10, v%d", 32 + 2 * i)
    a("v_mov_b32 v12, v10")
    wave_umax(a, 12, 48)
    a("v_cmp_eq_u32 vcc, s48, v10")
    a("v_cndmask_b32 v12, v10, v11, vcc")
    wave_umax(a, 12, 49)
    a("v_mov_b32 v12, s48"); a("v_mov_b32 v13, s49")
    for v in (12, 13):
        a("v_and_b32 v%d, s7, v%d", v, v)
        a("v_ashrrev_i32 v14, 31, v%d", v)
        a("v_not_b32 v14, v14")
        a("v_or_b32 v14, 0x80000000, v14")
        a("v_xor_b32 v%d, v%d, v14", v, v)
        a("v_and_b32 v%d, s7, v%d", v, v)
        a("v_mul_f32 v%d, 0x%x, v%d", v, f32(-1.4426950408889634), v)
        a("v_exp_f32 v%d, v%d", v, v)
        a("v_add_f32 v%d, 1.0, v%d", v, v)
        a("v_rcp_f32 v%d, v%d", v, v)
    a("v_cvt_pk_bf16_f32 v18, v12, v13")
    a("s_and_b32 s48, s48, 0xffff")
    a("s_lshl_b32 s49, s49, 16")
    a("s_or_b32 s48, s48, s49")
    a("v_mov_b32 v16, s48"); a("v_mov_b32 v17, 0"); a("v_mov_b32 v19, 0")
    a("v_mov_b32 v8, %d", F_TOP)
    a("s_mov_b64 exec, 1")
    a("ds_write_b128 v8, v[16:19]")
    a("s_cmp_lg_u32 s44, 0")
    a("s_cbranch_scc1 FF_notop")
    a("v_mov_b32 v8, 0x%x", TOP_OFF)
    a("buffer_store_dwordx4 v[16:19], v8, %s, 0 offen sc1", sr(S_WS))
    a.label("FF_notop")
    a("s_mov_b64 exec, -1")
    a("s_waitcnt lgkmcnt(0)")
    a.label("FF_b1")
    a("s_barrier")
    a("s_cmp_ge_u32 s3, 10")
    a("s_cbranch_scc1 FF_b2")
    a("v_mov_b32 v8, %d", F_TOP)
    a("ds_read_b32 v9, v8")
    a("v_and_b32 v10, 1, v2")
    a("v_lshlrev_b32 v10, 4, v10")
    a("s_waitcnt lgkmcnt(0)")
    a("v_bfe_u32 v9, v9, v10, 16")
    a("v_lshlrev_b32 v11, 3, v9")
    a("buffer_load_dword v12, v11, %s, 0 offen sc1", sr(S_WS))
    a("v_and_b32 v10, 1023, v9")
    a("v_lshrrev_b32 v9, 10, v9")
    a("v_lshl_add_u32 v9, v10, 1, v9")
    a("v_mul_u32_u24 v9, 1280, v9")
    a("v_lshl_add_u32 v9, v3, 4, v9")
    a("s_lshl_b32 s50, s3, 7")
    a("buffer_load_dwordx4 v[16:19], v9, %s, s50 offen", sr(S_X))
    a("buffer_load_dwordx4 v[20:23], v9, %s, s50 offen offset:64", sr(S_X))
    a("s_waitcnt vmcnt(2)")
    a("v_and_b32 v13, s7, v12")
    a("v_rcp_f32 v13, v13")
    a("v_lshlrev_b32 v12, 16, v12")
    a("s_waitcnt vmcnt(1)")
    norm8(a, 16, 16, 24, 12, 13, 7)
    for t in range(8):
        a("v_mfma_f32_16x16x32_bf16 %s, %s, v[16:19], 0", vr(B3 + 4 * t, 4), vr(B0 + 4 * t, 4))
    a("s_waitcnt vmcnt(0)")
    norm8(a, 20, 20, 24, 12, 13, 7)
    for t in range(8):
        a("v_mfma_f32_16x16x32_bf16 %s, %s, v[20:23], %s", vr(B3 + 4 * t, 4), vr(B1 + 4 * t, 4), vr(B3 + 4 * t, 4))
    a("s_lshl_b32 s50, s3, 10")
    a("s_add_u32 s50, s50, %d", F_P1)
    a("v_lshlrev_b32 v8, 9, v6")
    a("v_lshl_add_u32 v8, v3, 4, v8")
    a("v_add_u32 v8, s50, v8")
    smov64(a, 52, 0x0003000300030003)
    a("s_mov_b64 exec, s[52:53]")
    for t in range(8):
        a("ds_write_b128 v8, %s offset:%d", vr(B3 + 4 * t, 4), t * 64)
    a("s_mov_b64 exec, -1")
    a("s_waitcnt lgkmcnt(0)")
    a.label("FF_b2")
    a("s_barrier")
    a("s_cmp_ge_u32 s3, 2")
    a("s_cbranch_scc1 FF_b3")
    a("v_and_b32 v8, 7, v2")
    a("v_lshlrev_b32 v8, 4, v8")
    a("v_lshrrev_b32 v9, 3, v2")
    a("v_add_lshl_u32 v8, v8, v9, 2")
    a("s_lshl_b32 s50, s3, 9")
    a("s_add_u32 s50, s50, %d", F_P1)
    a("v_add_u32 v8, s50, v8")
    a("v_add_u32 v9, 32, v8")
    for i in range(5):
        a("ds_read2st64_b32 %s, v8 offset0:%d offset1:%d", vr(B3 + 2 * i, 2), 8 * i, 8 * i + 4)
        a("ds_read2st64_b32 %s, v9 offset0:%d offset1:%d", vr(B3 + 10 + 2 * i, 2), 8 * i, 8 * i + 4)
    a("s_waitcnt lgkmcnt(0)")
    for i in range(1, 10):
        a("v_add_f32 v%d, v%d, v%d", B3, B3, B3 + i)
        a("v_add_f32 v%d, v%d, v%d", B3 + 10, B3 + 10, B3 + 10 + i)
    bf16r(a, B3, 7); bf16r(a, B3 + 10, 7)
    a("v_mul_f32 v10, 0x%x, v%d", f32(-1.4426950408889634), B3)
    a("v_exp_f32 v10, v10")
    a("v_add_f32 v10, 1.0, v10")
    a("v_rcp_f32 v10, v10")
    a("v_mul_f32 v10, v10, v%d", B3)
    bf16r(a, 10, 7)
    a("v_mul_f32 v10, v10, v%d", B3 + 10)
    a("v_cvt_pk_bf16_f32 v10, v10, v10")
    a("s_lshl_b32 s50, s3, 7")
    a("s_add_u32 s50, s50, %d", F_H)
    a("v_lshl_add_u32 v8, v2, 1, s50")
    a("ds_write_b16 v8, v10")
    a("s_waitcnt lgkmcnt(0)")
    a.label("FF_b3")
    a("s_barrier")
    a("s_cmp_ge_u32 s3, 10")
    a("s_cbranch_scc1 FF_b4")
    a("v_and_b32 v8, 1, v2")
    a("v_lshlrev_b32 v8, 7, v8")
    a("v_lshl_add_u32 v8, v3, 4, v8")
    a("s_lshl_b32 s50, s49, 6")
    a("s_add_u32 s50, s50, %d", F_H)
    a("v_add_u32 v8, s50, v8")
    a("ds_read_b128 v[16:19], v8")
    a("s_mul_i32 s50, s49, 5120")
    a("s_lshl_b32 s51, s48, 9")
    a("s_add_u32 s50, s50, s51")
    a("s_add_u32 s50, s50, %d", F_P2)
    a("v_mul_u32_u24 v8, 2560, v6")
    a("v_lshl_add_u32 v8, v3, 4, v8")
    a("v_add_u32 v8, s50, v8")
    a("s_waitcnt lgkmcnt(0)")
    for t in range(8):
        a("v_mfma_f32_16x16x32_bf16 %s, %s, v[16:19], 0", vr(B3 + 4 * t, 4), vr(B2 + 4 * t, 4))
    a("s_mov_b64 exec, s[52:53]")
    for t in range(8):
        a("ds_write_b128 v8, %s offset:%d", vr(B3 + 4 * t, 4), t * 64)
    a("s_mov_b64 exec, -1")
    a("s_waitcnt lgkmcnt(0)")
    a.label("FF_b4")
    a("s_barrier")
    a("s_cmp_ge_u32 s3, 10")
    a("s_cbranch_scc1 FF_end")
    a("v_and_b32 v8, 3, v2")
    a("v_lshlrev_b32 v8, 5, v8")
    a("v_lshrrev_b32 v9, 2, v2")
    a("v_add_lshl_u32 v8, v8, v9, 2")
    a("s_lshl_b32 s50, s3, 9")
    a("s_add_u32 s50, s50, %d", F_P2)
    a("v_add_u32 v8, s50, v8")
    a("v_add_u32 v9, 5120, v8")
    a("ds_read2_b32 v[10:11], v8 offset0:0 offset1:16")
    a("ds_read2_b32 v[12:13], v9 offset0:0 offset1:16")
    a("s_mul_i32 s50, s44, 10240")
    a("s_add_u32 s50, s50, 0x%x", Y_OFF)
    a("v_lshlrev_b32 v8, 4, v0")
    a("v_mov_b32 v17, 0"); a("v_mov_b32 v19, 0")
    a("s_waitcnt lgkmcnt(0)")
    a("v_add_f32 v16, v10, v12")
    a("v_add_f32 v18, v11, v13")
    a("buffer_store_dwordx4 v[16:19], v8, %s, s50 offen sc1", sr(S_WS))
    a.label("FF_end")

def k1_body():
    a = Asm()
    a("s_cmp_ge_u32 s2, 256")
    a("s_cbranch_scc1 K1_end")
    stamp(a, 0)
    stamp_init(a)
    load_ptrs(a)
    a("v_lshrrev_b32 v1, 6, v0")
    a("v_and_b32 v2, 63, v0")
    a("v_readfirstlane_b32 s3, v1")
    a("s_mov_b32 s7, 0xffff0000")
    p1_decode(a)
    a("s_waitcnt lgkmcnt(0)")
    srd(a, S_X, P_X, 2048 * 1280)
    srd(a, S_WQKV, P_WQKV, 640 * 3840)
    srd(a, S_WS, P_WS, WS_BYTES)
    a("s_cmp_ge_u32 s5, 24")
    a("s_cbranch_scc1 K1_other")
    a("s_cmp_ge_u32 s3, 4")
    a("s_cbranch_scc1 K1_comp")
    p1_loader(a)
    a("s_branch K1_ost")
    a.label("K1_comp")
    a("s_sub_u32 s3, s3, 4")
    p1_compute(a)
    a.label("K1_ost")
    p1_ostore(a)
    stamp(a, 6)
    if STAMPS:
        a("s_waitcnt vmcnt(0)")
        stamp(a, 7)
    stamp_flush(a, [0, 4])
    a("s_branch K1_end")
    a.label("K1_other")
    a("s_cmp_ge_u32 s5, 27")
    a("s_cbranch_scc1 K1_end")
    ffn_role(a)
    a.label("K1_end")
    a("s_endpgm")
    return a


L2_O = 0
L2_X = 65536
LDS2 = 65536 + 49152
S_O = 32

def p2_decode(a, endlabel):
    a("s_and_b32 s4, s2, 7")
    a("s_lshr_b32 s5, s2, 3")
    a("s_cmp_ge_u32 s5, 27")
    a("s_cbranch_scc1 %s", endlabel)
    a("s_mul_i32 s6, s4, 27")
    a("s_add_u32 s6, s6, s5")
    a("s_cmp_ge_u32 s6, 215")
    a("s_cbranch_scc1 %s", endlabel)
    a("s_mul_i32 s45, s6, 205")
    a("s_lshr_b32 s45, s45, 10")
    a("s_mul_i32 s46, s45, 5")
    a("s_sub_u32 s46, s6, s46")
    a("s_and_b32 s47, s3, 3")
    a("s_lshr_b32 s48, s3, 2")

WR = 40
def p2_wo_issue(a):
    a("v_lshrrev_b32 v8, 1, v3")
    a("v_mul_u32_u24 v8, 80, v8")
    a("v_and_b32 v9, 1, v3")
    a("v_lshl_add_u32 v8, v9, 3, v8")
    a("v_mul_u32_u24 v8, 1280, v8")
    a("v_lshl_add_u32 v8, v6, 2, v8")
    a("s_lshl_b32 s50, s46, 8")
    a("s_lshl_b32 s51, s47, 6")
    a("s_add_u32 s50, s50, s51")
    a("v_add_u32 v8, s50, v8")
    a("v_add_u32 v9, 5120, v8")
    a("s_mul_i32 s50, s48, %d", 320 * 1280)
    for ks in range(10):
        for j in range(8):
            a("buffer_load_dword v%d, v%d, %s, s50 offen offset:%d", WR + 8 * (ks + 1) + j, 8 + j // 4, sr(S_WO), (j % 4) * 1280)
        if ks < 9: a("s_add_u32 s50, s50, %d", (16 if ks != 4 else 96) * 1280)

def p2_wo_perm(a, base_cnt):
    a("s_mov_b32 s52, 0x05040100")
    a("s_mov_b32 s53, 0x07060302")
    for ks in range(10):
        a("s_waitcnt vmcnt(%d)", min(63, base_cnt + 8 * (9 - ks)))
        src, dst = WR + 8 * (ks + 1), WR + 8 * ks
        for h in range(2):
            for p in range(4):
                a("v_perm_b32 v%d, v%d, v%d, s%d", dst + 4 * h + p, src + 2 * p + 1, src + 2 * p, 52 + h)

def p2_o_issue(a):
    a("s_mul_i32 s50, s3, %d", 2048 * 160)
    a("s_mul_i32 s51, s45, 7680")
    a("s_add_u32 s50, s50, s51")
    a("s_add_u32 s50, s50, 0x%x", O_OFF)
    a("s_add_u32 s%d, s%d, s50", S_O, P_WS)
    a("s_addc_u32 s%d, s%d, 0", S_O + 1, P_WS + 1)
    a("s_and_b32 s%d, s%d, 0xffff", S_O + 1, S_O + 1)
    a("s_sub_u32 s50, %d, s51", 2048 * 160)
    a("s_min_u32 s%d, s50, 7680", S_O + 2)
    a("s_mov_b32 s%d, 0x20000", S_O + 3)
    a("v_lshlrev_b32 v10, 4, v2")
    a("s_lshl_b32 s50, s3, 13")
    a("s_movk_i32 s51, 4096")
    for hf in range(2):
        a("s_add_u32 m0, s50, %d", L2_O + hf * 4096)
        for i in range(4):
            a("buffer_load_dwordx4 v10, %s, %s offen offset:%d sc1 lds", sr(S_O), "s51" if hf else "0", i * 1024)

XR, XN, TT = 128, 132, 136
def p2_res_issue(a):
    a("s_mul_i32 s50, s45, 48")
    a("s_lshl_b32 s51, s48, 4")
    a("s_add_u32 s54, s50, s51")
    a("v_add_u32 v11, s54, v6")
    a("v_lshlrev_b32 v12, 3, v11")
    a("buffer_load_dword v14, v12, %s, 0 offen sc1", sr(S_WS))
    a("v_and_b32 v12, 1023, v11")
    a("v_lshrrev_b32 v13, 10, v11")
    a("v_lshl_add_u32 v12, v12, 1, v13")
    a("v_mul_u32_u24 v12, 1280, v12")
    a("v_lshl_add_u32 v12, v3, 4, v12")
    a("s_lshl_b32 s50, s46, 8")
    a("s_lshl_b32 s51, s47, 6")
    a("s_add_u32 s55, s50, s51")
    a("v_add_u32 v12, s55, v12")
    a("v_mov_b32 v13, 0x%x", OOB)
    a("v_cmp_gt_u32 vcc, 2048, v11")
    a("v_cndmask_b32 v12, v13, v12, vcc")
    a("buffer_load_dwordx4 %s, v12, %s, 0 offen", vr(XR, 4), sr(S_X))
    a("v_mov_b32 v13, 0x%x", TOP_OFF)
    a("buffer_load_dwordx4 %s, v13, %s, 0 offen sc1", vr(TT + 8, 4), sr(S_WS))

def p2_res_compute(a):
    a("v_and_b32 v15, s7, v14")
    a("v_max_f32 v15, 0x%x, v15", f32(1e-3))
    a("v_rcp_f32 v15, v15")
    a("v_lshlrev_b32 v14, 16, v14")
    norm8(a, XR, XN, TT, 14, 15, 7)
    a("v_readfirstlane_b32 s56, v%d", TT + 8)
    a("v_readfirstlane_b32 s57, v%d", TT + 10)
    for k in range(2):
        skip = a.newlabel("P2_noupd")
        if k == 0:
            a("s_and_b32 s58, s56, 0xffff"); a("s_lshl_b32 s59, s57, 16")
        else:
            a("s_lshr_b32 s58, s56, 16"); a("s_and_b32 s59, s57, 0xffff0000")
        a("s_sub_u32 s50, s58, s54")
        a("s_cmp_ge_u32 s50, 16")
        a("s_cbranch_scc1 %s", skip)
        a("v_mul_u32_u24 v13, %d, v3", 6 * 10240)
        a("v_lshl_add_u32 v13, v6, 4, v13")
        a("s_lshl_b32 s51, s55, 2")
        a("s_add_u32 s51, s51, 0x%x", Y_OFF + k * 5120)
        for n in range(6):
            a("buffer_load_dwordx4 %s, v13, %s, s51 offen sc1", vr(16 + 4 * n, 4), sr(S_WS))
            if n < 5: a("s_add_u32 s51, s51, 10240")
        a("s_waitcnt vmcnt(0)")
        for n in range(1, 6):
            a("v_add_f32 v16, v16, v%d", 16 + 4 * n)
            a("v_add_f32 v18, v18, v%d", 18 + 4 * n)
        for swap in ("v_permlane32_swap_b32", "v_permlane16_swap_b32"):
            a("v_mov_b32 v17, v16"); a("v_mov_b32 v19, v18")
            a("%s v16, v17", swap); a("%s v18, v19", swap)
            a("v_add_f32 v16, v16, v17"); a("v_add_f32 v18, v18, v19")
        bf16r(a, 16, 7); bf16r(a, 18, 7)
        a("v_mul_f32 v16, s59, v16"); a("v_mul_f32 v18, s59, v18")
        a("v_cvt_pk_bf16_f32 v16, v16, v18")
        a("v_lshlrev_b32 v17, 4, v3")
        for r in range(4):
            a("ds_bpermute_b32 v%d, v17, v16 offset:%d", 20 + r, 4 * r)
        a("v_cmp_eq_u32 vcc, s58, v11")
        a("s_waitcnt lgkmcnt(0)")
        for r in range(4):
            a("v_cndmask_b32 v%d, 0, v%d, vcc", 20 + r, 20 + r)
            a("v_lshlrev_b32 v24, 16, v%d", 20 + r)
            a("v_and_b32 v25, s7, v%d", 20 + r)
            a("v_lshlrev_b32 v26, 16, v%d", XN + r)
            a("v_and_b32 v27, s7, v%d", XN + r)
            a("v_add_f32 v24, v24, v26")
            a("v_add_f32 v25, v25, v27")
            a("v_cvt_pk_bf16_f32 v%d, v24, v25", XN + r)
        a.label(skip)

AC2 = 16
OF = 144
def p2_gemm(a):
    a("v_lshrrev_b32 v7, 1, v3")
    a("s_lshl_b32 s50, s48, 2")
    a("v_add_u32 v7, s50, v7")
    a("v_lshlrev_b32 v7, 13, v7")
    a("v_mul_u32_u24 v8, 160, v6")
    a("v_add_u32 v7, v7, v8")
    a("v_and_b32 v8, 1, v3")
    a("v_lshl_add_u32 v7, v8, 4, v7")
    a("s_mul_i32 s50, s48, 2560")
    a("v_add_u32 v8, s50, v7")
    a("v_add_u32 v9, 2560, v8")
    a("s_cmp_eq_u32 s48, 0")
    a("s_cselect_b32 s50, 5120, 0")
    a("v_add_u32 v10, s50, v7")
    def reads(ks):
        for mu in range(3):
            a("ds_read_b128 %s, v%d offset:%d", vr(OF + (ks % 2) * 12 + mu * 4, 4), 8 + mu, L2_O + (ks // 5) * 16384 + (ks % 5) * 32)
    a("s_waitcnt vmcnt(0)")
    a("s_barrier")
    reads(0)
    for ks in range(10):
        if ks < 9:
            reads(ks + 1)
            a("s_waitcnt lgkmcnt(3)")
        else:
            a("s_waitcnt lgkmcnt(0)")
        for mu in range(3):
            for e in range(2):
                d = vr(AC2 + (mu * 2 + e) * 4, 4)
                a("v_mfma_f32_16x16x32_bf16 %s, %s, %s, %s", d, vr(WR + 8 * ks + 4 * e, 4), vr(OF + (ks % 2) * 12 + mu * 4, 4), d if ks else "0")
    a("s_lshl_b32 s50, s47, 1")
    a("s_add_u32 s50, s50, s48")
    a("s_mul_i32 s50, s50, 6144")
    a("s_add_u32 s50, s50, %d", L2_X)
    a("v_lshl_add_u32 v7, v2, 4, s50")
    a("s_add_u32 s51, s48, 1")
    a("s_lshl_b32 s51, s51, 11")
    a("v_add_u32 v8, s51, v7")
    a("s_cmp_eq_u32 s48, 0")
    a("s_cselect_b32 s51, 4096, 0")
    a("v_add_u32 v9, s51, v7")
    for mu in (1, 2):
        for e in range(2):
            a("ds_write_b128 v%d, %s offset:%d", 7 + mu, vr(AC2 + (mu * 2 + e) * 4, 4), e * 1024)
    a("s_waitcnt lgkmcnt(0)")

def p2_final(a):
    a("s_mul_i32 s50, s47, 12288")
    a("s_lshl_b32 s51, s48, 11")
    a("s_add_u32 s50, s50, s51")
    a("s_add_u32 s50, s50, %d", L2_X)
    a("s_cmp_eq_u32 s48, 0")
    a("s_cselect_b32 s51, 6144, 0")
    a("s_add_u32 s50, s50, s51")
    a("v_lshl_add_u32 v7, v2, 4, s50")
    a("s_barrier")
    a("ds_read_b128 v[24:27], v7")
    a("ds_read_b128 v[28:31], v7 offset:1024")
    a("s_cmp_lt_u32 s48, 2")
    a("s_cbranch_scc1 P2_own")
    a("ds_read_b128 v[16:19], v7 offset:6144")
    a("ds_read_b128 v[20:23], v7 offset:7168")
    a.label("P2_own")
    a("s_waitcnt lgkmcnt(0)")
    for i in range(8): a("v_add_f32 v%d, v%d, v%d", 16 + i, 16 + i, 24 + i)
    for r in range(4): a("v_cvt_pk_bf16_f32 v%d, v%d, v%d", 24 + r, 16 + r, 20 + r)
    for src in (XR, XN):
        for r in range(4):
            a("v_lshlrev_b32 v16, 16, v%d", 24 + r)
            a("v_and_b32 v17, s7, v%d", 24 + r)
            a("v_lshlrev_b32 v18, 16, v%d", src + r)
            a("v_and_b32 v19, s7, v%d", src + r)
            a("v_add_f32 v16, v16, v18")
            a("v_add_f32 v17, v17, v19")
            a("v_cvt_pk_bf16_f32 v%d, v16, v17", 24 + r)
    a("buffer_store_dwordx4 v[24:27], v12, %s, 0 offen", sr(S_OUT))

def k2_body():
    a = Asm()
    load_ptrs(a)
    a("v_lshrrev_b32 v1, 6, v0")
    a("v_and_b32 v2, 63, v0")
    a("v_readfirstlane_b32 s3, v1")
    a("s_mov_b32 s7, 0xffff0000")
    a("v_lshrrev_b32 v3, 4, v2")
    a("v_and_b32 v6, 15, v2")
    p2_decode(a, "K2_end")
    a("s_waitcnt lgkmcnt(0)")
    srd(a, S_X, P_X, 2048 * 1280)
    srd(a, S_WO, P_WO, 640 * 1280)
    srd(a, S_WS, P_WS, WS_BYTES)
    srd(a, S_OUT, P_OUT, 2048 * 1280)
    p2_res_issue(a)
    a("s_cmp_ge_u32 s3, 8")
    a("s_cbranch_scc1 K2_fin")
    p2_o_issue(a)
    p2_wo_issue(a)
    p2_wo_perm(a, 0)
    p2_res_compute(a)
    p2_gemm(a)
    a("s_branch K2_final")
    a.label("K2_fin")
    a("s_waitcnt vmcnt(0)")
    p2_res_compute(a)
    a("s_barrier")
    a.label("K2_final")
    p2_final(a)
    a.label("K2_end")
    a("s_endpgm")
    return a

if __name__ == "__main__":
    if "stamps" in sys.argv: STAMPS = True
    if "cyc" in sys.argv: CYC = True
    k0 = hazard.fix(k0_body().text())
    k1 = hazard.fix(k1_body().text())
    k2 = hazard.fix(k2_body().text())
    open("v0.s", "w").write(module([("k0_kernel", 256, 512, 0), ("k1_kernel", 256, 768, LDS1), ("k2_kernel", 216, 768, LDS2)],
        [("k0_kernel", k0, 48, 96, None), ("k1_kernel", k1, 168, 102, None), ("k2_kernel", k2, 168, 102, None)]))
```

```python
import sys, struct
from asmlib import *
import hazard

def f32(x): return struct.unpack("<I", struct.pack("<f", x))[0]

STAT_OFF = 0x0
KEY_OFF  = 0x8000
TOP_OFF  = 0x10000
Y_OFF    = 0x20000
O_OFF    = 0x100000
STAMP_OFF = 0x8000000
WS_BYTES = 0x10000000
OOB = 0x80000000

S_X, S_WQKV, S_WS, S_WO, S_OUT, S_WR, S_G, S_U, S_D = 8, 12, 16, 20, 24, 28, 32, 36, 40
P_X, P_WQKV, P_WO, P_WR, P_G, P_U, P_D, P_OUT, P_DBG, P_WS = 64, 66, 68, 72, 74, 76, 78, 80, 82, 84
def sr(n): return "s[%d:%d]" % (n, n + 3)
def vr(n, c): return "v[%d:%d]" % (n, n + c - 1) if c > 1 else "v%d" % n

def load_ptrs(a):
    a("s_load_dwordx16 s[64:79], s[0:1], 0")
    a("s_load_dwordx4 s[80:83], s[0:1], 64")
    a("s_load_dwordx2 s[84:85], s[0:1], 80")

STAMPS = False
CYC = False
def stamp(a, i):
    if STAMPS: a("%s s[%d:%d]", "s_memtime" if CYC else "s_memrealtime", 86 + 2 * i, 87 + 2 * i)
def stamp_init(a):
    if STAMPS:
        for i in range(88, 102): a("s_mov_b32 s%d, 0", i)
def stamp_flush(a, waves, base=0):
    if not STAMPS: return
    n = len(waves)
    a("s_waitcnt lgkmcnt(0)")
    a("v_lshrrev_b32 v1, 6, v0")
    a("v_readfirstlane_b32 s60, v1")
    done = a.newlabel("ST_done%x" % base)
    for k, w in enumerate(waves):
        nxt = a.newlabel("ST_n%x" % base)
        a("s_cmp_lg_u32 s60, %d", w)
        a("s_cbranch_scc1 %s", nxt)
        a("s_mul_i32 s61, s2, %d", n * 64)
        a("s_add_u32 s61, s61, 0x%x", STAMP_OFF + (base & ~1) + k * 64)
        for i in range(16): a("v_mov_b32 v%d, s%d", 16 + i, 86 + i)
        a("v_mov_b32 v1, 0")
        a("s_mov_b64 exec, 1")
        for i in range(4):
            a("buffer_store_dwordx4 v[%d:%d], v1, %s, s61 offen offset:%d", 16 + 4 * i, 19 + 4 * i, sr(S_WS), 16 * i)
        a("s_mov_b64 exec, -1")
        a("s_branch %s", done)
        a.label(nxt)
    a.label(done)

def wave_sum(a, v, tmp_s):
    for sh in (1, 2, 4, 8):
        a("v_add_f32_dpp v%d, v%d, v%d row_shr:%d row_mask:0xf bank_mask:0xf bound_ctrl:1", v, v, v, sh)
    a("v_add_f32_dpp v%d, v%d, v%d row_bcast:15 row_mask:0xa bank_mask:0xf", v, v, v)
    a("v_add_f32_dpp v%d, v%d, v%d row_bcast:31 row_mask:0xc bank_mask:0xf", v, v, v)
    a("v_readlane_b32 s%d, v%d, 63", tmp_s, v)

def wave_umax(a, v, tmp_s):
    for sh in (1, 2, 4, 8):
        a("v_max_u32_dpp v%d, v%d, v%d row_shr:%d row_mask:0xf bank_mask:0xf bound_ctrl:1", v, v, v, sh)
    a("v_max_u32_dpp v%d, v%d, v%d row_bcast:15 row_mask:0xa bank_mask:0xf", v, v, v)
    a("v_max_u32_dpp v%d, v%d, v%d row_bcast:31 row_mask:0xc bank_mask:0xf", v, v, v)
    a("v_readlane_b32 s%d, v%d, 63", tmp_s, v)

def rpass_issue(a, vlane, s_row, vx, vw, vt, st):
    a("v_lshlrev_b32 v%d, 2, v%d", vt, vlane)
    a("s_mul_i32 s%d, s%d, 1280", st, s_row)
    for j in range(5):
        a("buffer_load_dword v%d, v%d, %s, s%d offen offset:%d", vx + j, vt, sr(S_X), st, 256 * j)
    for j in range(5):
        a("buffer_load_dword v%d, v%d, %s, 0 offen offset:%d", vw + j, vt, sr(S_WR), 256 * j)

def rpass_compute(a, vx, vw, vf, vt, st, s_mask):
    for j in range(5):
        a("v_lshlrev_b32 v%d, 16, v%d", vf + 2 * j, vx + j)
        a("v_and_b32 v%d, s%d, v%d", vf + 2 * j + 1, s_mask, vx + j)
    a("v_add_f32 v%d, v%d, v%d", vt, vf, vf + 1)
    for j in range(2, 10):
        a("v_add_f32 v%d, v%d, v%d", vt, vt, vf + j)
    wave_sum(a, vt, st)
    a("v_mov_b32 v%d, 0x%x", vt + 1, f32(1.0 / 640))
    a("v_mul_f32 v%d, s%d, v%d", vt + 2, st, vt + 1)
    a("v_sub_f32 v%d, v%d, v%d", vt + 3, vf, vt + 2)
    a("v_mul_f32 v%d, v%d, v%d", vt, vt + 3, vt + 3)
    for j in range(1, 10):
        a("v_sub_f32 v%d, v%d, v%d", vt + 3, vf + j, vt + 2)
        a("v_fmac_f32 v%d, v%d, v%d", vt, vt + 3, vt + 3)
    wave_sum(a, vt, st)
    a("v_mul_f32 v%d, s%d, v%d", vt, st, vt + 1)
    a("v_cvt_pk_bf16_f32 v%d, v%d, v%d", vt + 2, vt + 2, vt)
    a("v_and_b32 v%d, s%d, v%d", vt, s_mask, vt + 2)
    a("v_add_f32 v%d, 0x%x, v%d", vt, f32(1e-5), vt)
    a("v_cvt_pk_bf16_f32 v%d, v%d, v%d", vt, vt, vt)
    a("v_and_b32 v%d, s%d, v%d", vt, s_mask, vt)
    a("v_sqrt_f32 v%d, v%d", vt, vt)
    a("v_cvt_pk_bf16_f32 v%d, v%d, v%d", vt, vt, vt)
    a("v_and_b32 v%d, s%d, v%d", vt, s_mask, vt)
    a("v_rcp_f32 v%d, v%d", vt + 3, vt)
    a("v_lshlrev_b32 v%d, 16, v%d", vt + 1, vt + 2)
    a("v_bfi_b32 v%d, s%d, v%d, v%d", vt, s_mask, vt, vt + 2)
    for j in range(10):
        a("v_sub_f32 v%d, v%d, v%d", vf + j, vf + j, vt + 1)
    for j in range(5):
        a("v_cvt_pk_bf16_f32 v%d, v%d, v%d", vx + j, vf + 2 * j, vf + 2 * j + 1)
    for j in range(5):
        a("v_lshlrev_b32 v%d, 16, v%d", vf + 2 * j, vx + j)
        a("v_and_b32 v%d, s%d, v%d", vf + 2 * j + 1, s_mask, vx + j)
    for j in range(10):
        a("v_mul_f32 v%d, v%d, v%d", vf + j, vf + j, vt + 3)
    for j in range(5):
        a("v_cvt_pk_bf16_f32 v%d, v%d, v%d", vx + j, vf + 2 * j, vf + 2 * j + 1)
    a("v_mov_b32 v%d, 0", vt + 1)
    for j in range(5):
        a("v_dot2c_f32_bf16 v%d, v%d, v%d", vt + 1, vx + j, vw + j)
    wave_sum(a, vt + 1, st)
    a("v_mov_b32 v%d, s%d", vt + 1, st)
    a("v_cvt_pk_bf16_f32 v%d, v%d, v%d", vt + 1, vt + 1, vt + 1)

def k0_body():
    a = Asm()
    a("s_cmp_ge_u32 s2, 256")
    a("s_cbranch_scc1 K0_end")
    load_ptrs(a)
    a("v_lshrrev_b32 v1, 6, v0")
    a("v_and_b32 v2, 63, v0")
    a("v_readfirstlane_b32 s3, v1")
    a("s_lshl_b32 s4, s2, 3")
    a("s_add_u32 s4, s4, s3")
    a("s_mov_b32 s7, 0xffff0000")
    a("s_waitcnt lgkmcnt(0)")
    srd(a, S_X, P_X, 2048 * 1280)
    srd(a, S_WR, P_WR, 1280)
    srd(a, S_WS, P_WS, WS_BYTES)
    rpass_issue(a, 2, 4, 10, 16, 3, 5)
    a("s_waitcnt vmcnt(0)")
    rpass_compute(a, 10, 16, 24, 36, 5, 7)
    a("s_and_b32 s5, s4, 1")
    a("s_lshl_b32 s5, s5, 10")
    a("s_lshr_b32 s6, s4, 1")
    a("s_add_u32 s5, s5, s6")
    a("v_lshlrev_b32 v37, 16, v37")
    a("v_ashrrev_i32 v38, 31, v37")
    a("v_or_b32 v38, 0x80000000, v38")
    a("v_xor_b32 v37, v37, v38")
    a("v_and_b32 v37, s7, v37")
    a("v_or_b32 v40, s5, v37")
    a("v_mov_b32 v37, 0")
    a("v_mov_b32 v41, 0")
    a("s_lshl_b32 s6, s5, 3")
    a("v_mov_b32 v3, s6")
    a("v_cmp_eq_u32 vcc, 0, v2")
    a("s_and_saveexec_b64 s[44:45], vcc")
    a("buffer_store_dwordx2 v[36:37], v3, %s, 0 offen", sr(S_WS))
    a("s_mov_b32 s6, 0x%x", KEY_OFF)
    a("buffer_store_dwordx2 v[40:41], v3, %s, s6 offen", sr(S_WS))
    a.label("K0_end")
    a("s_endpgm")
    return a


SLOT = 45056
XOFF = 32768
L_VT = 135168
L_KH = 153600
L_CS = 157696
L_ST = 158720
L_OST = 0
LDS1 = 159744
NEG = f32(-1e30)
CEXP = f32((20 ** -0.5) * 1.4426950408889634)

def lane_masks():
    VB, VP = [], []
    for r in range(4):
        b = p = 0
        for l in range(64):
            tok, g = l & 15, l >> 4
            kk = 4 * g + r
            if 0 <= tok - kk <= 7: b |= 1 << l
            if kk >= tok + 9: p |= 1 << l
        VB.append(b); VP.append(p)
    return VB, VP

def smov64(a, s, val):
    a("s_mov_b32 s%d, 0x%x", s, val & 0xffffffff)
    a("s_mov_b32 s%d, 0x%x", s + 1, val >> 32)

def p1_decode(a):
    a("s_and_b32 s4, s2, 7")
    a("s_lshr_b32 s5, s2, 3")
    a("s_and_b32 s44, s4, 1")
    a("s_lshl_b32 s44, s44, 2")
    a("s_and_b32 s6, s5, 3")
    a("s_add_u32 s44, s44, s6")
    a("s_lshr_b32 s49, s4, 1")
    a("s_mul_i32 s49, s49, 6")
    a("s_lshr_b32 s50, s5, 2")
    a("s_add_u32 s49, s49, s50")
    a("s_cmp_ge_u32 s49, 12")
    a("s_cselect_b32 s45, 1, 0")
    a("s_mul_i32 s51, s45, 12")
    a("s_sub_u32 s49, s49, s51")
    a("s_mul_i32 s46, s49, 88")
    a("s_mul_i32 s50, s50, 427")
    a("s_mul_i32 s51, s6, 640")
    a("s_add_u32 s50, s50, s51")
    a("s_lshr_b32 s47, s50, 8")
    a("s_cmp_ge_u32 s47, 10")
    a("s_cselect_b32 s50, 10, 0")
    a("s_sub_u32 s47, s47, s50")

def p1_loader(a, rot=True):
    if not rot: a("s_mov_b32 s47, 0")
    a("v_lshrrev_b32 v3, 3, v2")
    a("s_lshl_b32 s6, s3, 3")
    a("v_add_u32 v3, s6, v3")
    a("v_lshrrev_b32 v4, 1, v3")
    a("v_xor_b32 v4, v4, v2")
    a("v_and_b32 v4, 7, v4")
    a("v_lshlrev_b32 v4, 4, v4")
    a("s_mul_i32 s6, s45, 1280")
    a("v_add_u32 v4, s6, v4")
    a("s_sub_u32 s6, s46, 8")
    a("v_add_u32 v3, s6, v3")
    a("s_movk_i32 s49, 2560")
    a("v_mov_b32 v7, 0x%x", OOB)
    for n in range(3):
        a("v_add_u32 v5, %d, v3", 32 * n)
        a("v_mad_u32_u24 v%d, v5, s49, v4", 10 + n)
        a("v_cmp_gt_u32 vcc, 1024, v5")
        a("v_cndmask_b32 v%d, v7, v%d, vcc", 10 + n, 10 + n)
    a("s_and_b32 s50, s3, 1")
    a("s_lshr_b32 s51, s3, 1")
    a("s_lshl_b32 s52, s51, 2")
    a("s_add_u32 s52, s52, s50")
    a("s_add_u32 s53, s52, s50")
    a("v_lshrrev_b32 v3, 5, v2")
    a("v_add_u32 v4, s53, v3")
    a("v_lshlrev_b32 v4, 1, v4")
    a("v_sub_u32 v4, v2, v4")
    a("v_and_b32 v4, 31, v4")
    a("v_mul_u32_u24 v5, 47, v4")
    a("v_lshrrev_b32 v5, 9, v5")
    a("v_mul_u32_u24 v6, 11, v5")
    a("v_sub_u32 v6, v4, v6")
    a("v_mul_u32_u24 v5, 1280, v5")
    a("v_lshl_add_u32 v5, v6, 4, v5")
    a("s_lshl_b32 s53, s52, 1")
    a("v_add_u32 v3, s53, v3")
    a("v_mul_u32_u24 v3, 3840, v3")
    a("s_mul_i32 s53, s44, 160")
    a("v_add3_u32 v13, v3, v5, s53")
    a("v_cmp_gt_u32 vcc, 10, v6")
    a("v_cndmask_b32 v13, v7, v13, vcc")
    a("v_lshlrev_b32 v3, 1, v2")
    a("s_sub_u32 s6, s46, 8")
    a("v_add_u32 v3, s6, v3")
    a("s_lshl_b32 s6, s45, 10")
    a("v_add_lshl_u32 v14, v3, s6, 3")
    a("v_cmp_gt_u32 vcc, 1024, v3")
    a("v_cndmask_b32 v14, v7, v14, vcc")
    a("s_lshl_b32 s54, s3, 10")
    a("s_add_u32 s54, s54, %d", XOFF)
    a("s_lshl_b32 s55, s52, 10")
    a("s_cmp_eq_u32 s3, 0")
    a("s_cselect_b32 s56, 0xffffff00, -1")
    a("s_mov_b32 s57, -1")
    def issue():
        a("s_lshl_b32 s49, s47, 7")
        a("s_add_u32 s50, s48, s54")
        for n in range(3):
            a("s_mov_b32 m0, s50")
            if n == 0: a("s_mov_b64 exec, s[56:57]")
            else: a("s_nop 0")
            a("buffer_load_dwordx4 v%d, %s, s49 offen lds", 10 + n, sr(S_X))
            if n == 0: a("s_mov_b64 exec, -1")
            a("s_add_u32 s50, s50, 4096")
        a("s_mul_i32 s49, s47, %d", 64 * 3840)
        a("s_add_u32 s50, s48, s55")
        for ks in range(2):
            for di in (0, 2, 8, 10):
                a("s_add_u32 m0, s50, %d", ks * 16384 + di * 1024)
                a("s_add_u32 s51, s49, %d", (ks * 32 + 2 * di) * 3840)
                a("buffer_load_dwordx4 v13, %s, s51 offen lds", sr(S_WQKV))
        a("s_add_u32 s47, s47, 1")
        a("s_cmp_ge_u32 s47, 10")
        a("s_cselect_b32 s47, 0, s47")
        a("s_add_u32 s48, s48, %d", SLOT)
        a("s_cmp_ge_u32 s48, %d", 3 * SLOT)
        a("s_cselect_b32 s48, 0, s48")
    a("s_mov_b32 s48, 0")
    a("s_mov_b32 s58, 0")
    a.label("P1L_pro")
    issue()
    a("s_add_u32 s58, s58, 1")
    a("s_cmp_lt_u32 s58, 3")
    a("s_cbranch_scc1 P1L_pro")
    stamp(a, 1)
    a("s_waitcnt vmcnt(22)")
    stamp(a, 2)
    a("s_barrier")
    a("s_mov_b32 s58, 1")
    a.label("P1L_loop")
    a("s_waitcnt vmcnt(11)")
    a("s_barrier")
    issue()
    a("s_add_u32 s58, s58, 1")
    a("s_cmp_lt_u32 s58, 8")
    a("s_cbranch_scc1 P1L_loop")
    a("s_mov_b32 m0, %d", L_ST)
    a("s_nop 0")
    a("buffer_load_dwordx4 v14, %s, 0 offen sc1 lds", sr(S_WS))
    stamp(a, 3)
    a("s_waitcnt vmcnt(12)")
    a("s_barrier")
    a("s_waitcnt vmcnt(1)")
    stamp(a, 4)
    a("s_barrier")
    a("s_waitcnt vmcnt(0)")
    stamp(a, 5)
    a("s_barrier")
    a("s_barrier")
    a("s_barrier")

ACC = 16
WF = 64
XF = 96
VA = 120
def acc(m, T): return ACC + (m * 4 + T) * 4

def p1_compute(a):
    a("s_and_b32 s49, s3, 3")
    a("s_lshr_b32 s50, s3, 2")
    a("v_lshrrev_b32 v3, 4, v2")
    a("v_bfe_u32 v4, v2, 2, 2")
    a("v_and_b32 v5, 3, v2")
    a("v_and_b32 v6, 15, v2")
    a("s_cmp_ge_u32 s3, 3")
    a("s_cbranch_scc1 P1C_noones")
    a("s_mul_i32 s51, s3, %d", SLOT)
    a("s_add_u32 s51, s51, %d", XOFF)
    a("v_lshl_add_u32 v7, v2, 4, s51")
    for i in range(4): a("v_mov_b32 v%d, 0x3f803f80", 8 + i)
    a("s_mov_b64 exec, 0xff")
    a("ds_write_b128 v7, v[8:11]")
    a("s_mov_b64 exec, -1")
    a.label("P1C_noones")
    a("v_and_b32 v7, 1, v3")
    a("v_lshl_add_u32 v7, v7, 2, v4")
    a("v_lshlrev_b32 v7, 2, v7")
    a("v_lshl_add_u32 v8, v3, 3, v4")
    a("v_lshlrev_b32 v8, 9, v8")
    a("s_mul_i32 s51, s49, 5")
    a("v_add_u32 v7, s51, v7")
    a("v_mov_b32 v9, v5")
    a("v_add_u32 v10, 22, v5")
    a("v_add_u32 v11, 44, v5")
    a("v_cmp_eq_u32 vcc, 0, v5")
    a("v_cndmask_b32 v11, v11, 4, vcc")
    a("v_lshlrev_b32 v12, 2, v5")
    a("v_add_u32 v12, 40, v12")
    a("v_cndmask_b32 v12, v12, 26, vcc")
    a("s_and_b32 s52, s49, 1")
    a("s_sub_u32 s52, 21, s52")
    a("s_sub_u32 s52, s52, s51")
    a("v_mov_b32 v13, s52")
    a("v_cmp_eq_u32 vcc, 3, v5")
    a("v_cndmask_b32 v12, v12, v13, vcc")
    for T in range(4):
        a("v_add_u32 v13, v%d, v7", 9 + T)
        a("v_and_b32 v13, 63, v13")
        a("v_lshl_add_u32 v%d, v13, 3, v8", VA + T)
    a("v_lshrrev_b32 v7, 1, v6")
    a("v_xor_b32 v7, v7, v3")
    a("v_lshlrev_b32 v7, 4, v7")
    a("v_lshl_add_u32 v7, v6, 7, v7")
    a("s_mul_i32 s51, s50, %d", 48 * 128)
    a("s_add_u32 s51, s51, %d", XOFF)
    a("v_add_u32 v%d, s51, v7", VA + 4)
    a("v_xor_b32 v%d, 64, v%d", VA + 5, VA + 4)
    for i in range(48): a("v_mov_b32 v%d, 0", ACC + i)
    CUR = VA + 6
    def reads(ks):
        for T in range(4):
            for h in range(2):
                a("ds_read_b64_tr_b16 %s, v%d offset:%d", vr(WF + ks * 16 + T * 4 + h * 2, 2), CUR + T, ks * 16384 + h * 2048)
        for m in range(3):
            a("ds_read_b128 %s, v%d offset:%d", vr(XF + ks * 12 + m * 4, 4), CUR + 4 + ks, m * 2048)
    def mfmas(ks):
        for m in range(3):
            for T in range(4):
                a("v_mfma_f32_16x16x32_bf16 %s, %s, %s, %s", vr(acc(m, T), 4), vr(WF + ks * 16 + T * 4, 4), vr(XF + ks * 12 + m * 4, 4), vr(acc(m, T), 4))
    for i in range(16): a("v_mov_b32 v%d, 0", WF + 16 + i)
    for i in range(12): a("v_mov_b32 v%d, 0", XF + 12 + i)
    a("s_mov_b32 s48, 0")
    a("s_mov_b32 s58, 0")
    a("s_waitcnt lgkmcnt(0)")
    stamp(a, 1)
    a.label("P1C_loop")
    for i in range(6): a("v_add_u32 v%d, s48, v%d", CUR + i, VA + i)
    a("s_barrier")
    reads(0)
    mfmas(1)
    a("s_waitcnt lgkmcnt(0)")
    reads(1)
    mfmas(0)
    a("s_add_u32 s48, s48, %d", SLOT)
    a("s_cmp_ge_u32 s48, %d", 3 * SLOT)
    a("s_cselect_b32 s48, 0, s48")
    a("s_add_u32 s58, s58, 1")
    a("s_cmp_lt_u32 s58, 10")
    a("s_waitcnt lgkmcnt(0)")
    a("s_cbranch_scc1 P1C_loop")
    mfmas(1)
    stamp(a, 2)
    a("s_lshl_b32 s51, s49, 8")
    a("s_add_u32 s51, s51, %d", L_CS)
    a("v_lshl_add_u32 v7, v3, 4, s51")
    a("s_cmp_lg_u32 s50, 0")
    a("s_cbranch_scc1 P1C_nocs")
    smov64(a, 52, 0x0001000100010001)
    a("s_mov_b64 exec, s[52:53]")
    for T in range(4):
        a("ds_write_b128 v7, %s offset:%d", vr(acc(0, T), 4), T * 64)
    a("s_mov_b64 exec, -1")
    a.label("P1C_nocs")
    VB, VP = lane_masks()
    BB, BP, B0 = 64, 68, 72
    MB = 76
    a("v_mov_b32 v8, 0x%x", NEG)
    a("s_cmp_eq_u32 s46, 0")
    a("s_cselect_b32 s54, 1, 0")
    a("s_cmp_eq_u32 s50, 0")
    a("s_cselect_b32 s54, s54, 0")
    for r in range(4):
        smov64(a, 52, VB[r])
        a("v_cndmask_b32 v%d, v8, 0, s[52:53]", BB + r)
        if r % 2 == 0: a("v_cndmask_b32 v%d, 0, v9, s[52:53]" % (MB + r // 2) if False else "v_mov_b32 v9, 0xffff")
        if r % 2 == 0: a("v_cndmask_b32 v%d, 0, v9, s[52:53]", MB + r // 2)
        else:
            a("v_mov_b32 v9, s7")
            a("v_cndmask_b32 v10, 0, v9, s[52:53]")
            a("v_or_b32 v%d, v%d, v10", MB + r // 2, MB + r // 2)
        a("s_cmp_eq_u32 s54, 1")
        a("s_cselect_b32 s52, 0, s52")
        a("v_cndmask_b32 v%d, v8, 0, s[52:53]", B0 + r)
        smov64(a, 52, VP[r])
        a("v_cndmask_b32 v%d, v8, 0, s[52:53]", BP + r)
    ONES = 80
    for i in range(4): a("v_mov_b32 v%d, 0x3f803f80", ONES + i)
    a("s_mul_i32 s51, s50, %d", 48 * 8)
    a("s_add_u32 s51, s51, %d", L_ST)
    a("v_lshl_add_u32 v8, v6, 3, s51")
    a("s_waitcnt lgkmcnt(0)")
    a("s_barrier")
    stamp(a, 3)
    CS = 96
    STT = 112
    for T in range(4):
        a("ds_read_b128 %s, v7 offset:%d", vr(CS + T * 4, 4), T * 64)
    for m in range(3):
        a("ds_read_b64 %s, v8 offset:%d", vr(STT + 2 * m, 2), m * 128)
    a("s_mul_i32 s51, s49, 4608")
    a("s_mul_i32 s52, s50, %d", 48 * 48)
    a("s_add_u32 s51, s51, s52")
    a("s_add_u32 s55, s51, %d", L_VT)
    a("v_mul_u32_u24 v9, 48, v6")
    a("v_lshl_add_u32 v9, v3, 4, v9")
    a("s_sub_u32 s51, s55, 16")
    a("v_add_u32 v9, s51, v9")
    a("s_lshl_b32 s51, s49, 10")
    a("s_add_u32 s51, s51, %d", L_KH)
    a("v_lshl_add_u32 v10, v2, 4, s51")
    a("s_waitcnt lgkmcnt(0)")
    for m in range(3):
        st = STT + 2 * m
        a("v_and_b32 v%d, s7, v%d", st + 1, st)
        a("v_max_f32 v%d, 0x%x, v%d", st + 1, f32(1e-3), st + 1)
        a("v_rcp_f32 v%d, v%d", st + 1, st + 1)
        a("v_lshlrev_b32 v%d, 16, v%d", st, st)
    QF, KF, KP, T2 = 120, 136, 132, 148
    smov64(a, 52, 0xffff)
    for m in range(3):
        st = STT + 2 * m
        for T in range(4):
            for h in range(2):
                r = acc(m, T) + 2 * h
                a("v_pk_fma_f32 %s, %s, %s, %s op_sel_hi:[0,1,1] neg_lo:[1,0,0] neg_hi:[1,0,0]", vr(r, 2), vr(st, 2), vr(CS + T * 4 + 2 * h, 2), vr(r, 2))
        for T in range(4):
            for h in range(2):
                r = acc(m, T) + 2 * h
                a("v_pk_mul_f32 %s, %s, %s op_sel:[0,1]", vr(r, 2), vr(r, 2), vr(st, 2))
        dst = {0: QF + 4 * m, 1: KF + 4 * m, 2: T2 + 2 * m, 3: KF + 4 * m + 2}
        for T in range(4):
            for h in range(2):
                a("v_cvt_pk_bf16_f32 v%d, v%d, v%d", dst[T] + h, acc(m, T) + 2 * h, acc(m, T) + 2 * h + 1)
        for h in range(2):
            a("v_cndmask_b32 v%d, 0, v%d, s[52:53]", QF + 4 * m + 2 + h, T2 + 2 * m + h)
    a("s_mov_b32 s52, 0xffff0000")
    a("s_mov_b32 s53, -1")
    a("s_mov_b64 exec, s[52:53]")
    for m in range(3):
        a("ds_write2_b64 v9, %s, %s offset0:%d offset1:%d", vr(T2 + 2 * m, 2), vr(KF + 4 * m + 2, 2), m * 96, m * 96 + 1)
    a("s_mov_b64 exec, -1")
    a("s_cmp_lg_u32 s50, 0")
    a("s_cbranch_scc1 P1C_nokh")
    a("ds_write_b128 v10, %s", vr(KF + 8, 4))
    a.label("P1C_nokh")
    SB = lambda m: 16 + 8 * m
    SP = lambda m: 20 + 8 * m
    for m in range(3):
        a("v_mfma_f32_16x16x32_bf16 %s, %s, %s, %s", vr(SB(m), 4), vr(KF + 4 * m, 4), vr(QF + 4 * m, 4), vr(B0 if m == 0 else BB, 4))
    for m in (1, 2):
        a("v_mfma_f32_16x16x32_bf16 %s, %s, %s, %s", vr(SP(m), 4), vr(KF + 4 * m - 4, 4), vr(QF + 4 * m, 4), vr(BP, 4))
    a("v_lshl_add_u32 v11, v3, 2, v4")
    a("v_mul_u32_u24 v11, 48, v11")
    a("v_add_u32 v11, s55, v11")
    a("v_lshlrev_b32 v12, 2, v5")
    a("v_mov_b32 v13, 0x4201")
    a("v_bfe_u32 v13, v13, v12, 4")
    a("v_lshl_add_u32 v13, v13, 3, v11")
    a("v_mov_b32 v14, 0x5553")
    a("v_bfe_u32 v14, v14, v12, 4")
    a("v_lshl_add_u32 v14, v14, 3, v11")
    a("s_mul_i32 s51, s50, 768")
    a("v_subrev_u32 v11, s51, v13")
    a("v_subrev_u32 v12, s51, v14")
    a("s_waitcnt lgkmcnt(0)")
    a("s_barrier")
    stamp(a, 4)
    VT0, VT1 = 96, 104
    a("ds_read_b128 %s, v10", vr(KP, 4))
    a("ds_read_b64_tr_b16 %s, v11", vr(VT0, 2))
    a("ds_read_b64_tr_b16 %s, v12", vr(VT1, 2))
    for m in range(3):
        a("ds_read_b64_tr_b16 %s, v13 offset:%d", vr(VT0 + 2 + 2 * m, 2), m * 768)
        a("ds_read_b64_tr_b16 %s, v14 offset:%d", vr(VT1 + 2 + 2 * m, 2), m * 768)
    a("s_waitcnt lgkmcnt(8)")
    a("v_mfma_f32_16x16x32_bf16 %s, %s, %s, %s", vr(SP(0), 4), vr(KP, 4), vr(QF, 4), vr(BP, 4))
    a("s_mov_b32 s52, 0x%x", CEXP)
    order = (1, 2, 0)
    MX, TM = 40, 44
    for m in order:
        for r in range(4): a("v_max_f32 v%d, v%d, v%d", SB(m) + r, SB(m) + r, SP(m) + r)
    for m in order:
        a("v_max3_f32 v%d, v%d, v%d, v%d", MX + m, SB(m), SB(m) + 1, SB(m) + 2)
        a("v_max_f32 v%d, v%d, v%d", MX + m, MX + m, SB(m) + 3)
    for swap in ("v_permlane32_swap_b32", "v_permlane16_swap_b32"):
        for m in order: a("v_mov_b32 v%d, v%d", TM + m, MX + m)
        for m in order: a("%s v%d, v%d", swap, MX + m, TM + m)
        for m in order: a("v_max_f32 v%d, v%d, v%d", MX + m, MX + m, TM + m)
    for m in order: a("v_mul_f32 v%d, s52, v%d", MX + m, MX + m)
    for m in order:
        for r in range(4): a("v_fma_f32 v%d, v%d, s52, -v%d", SB(m) + r, SB(m) + r, MX + m)
    for m in order:
        for r in range(4): a("v_exp_f32 v%d, v%d", SB(m) + r, SB(m) + r)
    for m in order:
        for h in range(2):
            a("v_cvt_pk_bf16_f32 v%d, v%d, v%d", SP(m) + h, SB(m) + 2 * h, SB(m) + 2 * h + 1)
        for h in range(2):
            a("v_and_b32 v%d, v%d, v%d", SP(m) + 2 + h, SP(m) + h, MB + h)
        for h in range(2):
            a("v_xor_b32 v%d, v%d, v%d", SP(m) + h, SP(m) + h, SP(m) + 2 + h)
    a("s_waitcnt lgkmcnt(0)")
    O0 = lambda m: 120 + 12 * m
    O1 = lambda m: 124 + 12 * m
    OS = lambda m: 128 + 12 * m
    for m in order:
        a("v_mfma_f32_16x16x32_bf16 %s, %s, %s, 0", vr(OS(m), 4), vr(ONES, 4), vr(SP(m), 4))
        a("v_mfma_f32_16x16x32_bf16 %s, %s, %s, 0", vr(O0(m), 4), vr(VT0 + 2 * m, 4), vr(SP(m), 4))
        a("v_mfma_f32_16x16x32_bf16 %s, %s, %s, 0", vr(O1(m), 4), vr(VT1 + 2 * m, 4), vr(SP(m), 4))
    a("s_mul_i32 s51, s50, %d", 48 * 160)
    a("s_mul_i32 s52, s49, 40")
    a("s_add_u32 s51, s51, s52")
    a("v_mul_u32_u24 v9, 160, v6")
    a("v_lshl_add_u32 v9, v3, 3, v9")
    a("v_add_u32 v9, s51, v9")
    for m in order:
        a("v_rcp_f32 v%d, v%d", OS(m), OS(m))
    for m in order:
        for b in (O0(m), O0(m) + 2, O1(m), O1(m) + 2):
            a("v_pk_mul_f32 %s, %s, %s op_sel_hi:[1,0]", vr(b, 2), vr(b, 2), vr(OS(m), 2))
        for b in (O0(m), O1(m)):
            a("v_cvt_pk_bf16_f32 v%d, v%d, v%d", b, b, b + 1)
            a("v_cvt_pk_bf16_f32 v%d, v%d, v%d", b + 1, b + 2, b + 3)
        a("ds_write_b64 v9, %s offset:%d", vr(O0(m), 2), L_OST + m * 2560)
    a("s_mov_b64 exec, 0xffff")
    for m in order:
        a("ds_write_b64 v9, %s offset:%d", vr(O1(m), 2), L_OST + m * 2560 + 32)
    a("s_mov_b64 exec, -1")
    a("s_waitcnt lgkmcnt(0)")
    stamp(a, 5)
    a("s_barrier")

def p1_ostore(a):
    a("v_lshlrev_b32 v3, 4, v0")
    a("ds_read_b128 v[4:7], v3 offset:%d", L_OST + 1280)
    a("ds_read_b128 v[8:11], v3 offset:%d", L_OST + 1280 + 12288)
    a("s_sub_u32 s49, 1024, s46")
    a("s_min_u32 s49, s49, 88")
    a("s_mul_i32 s49, s49, 160")
    a("s_lshl_b32 s50, s45, 10")
    a("s_add_u32 s50, s50, s46")
    a("s_mul_i32 s50, s50, 160")
    a("s_mul_i32 s51, s44, %d", 2048 * 160)
    a("s_add_u32 s50, s50, s51")
    a("s_add_u32 s50, s50, 0x%x", O_OFF)
    a("v_mov_b32 v13, 0x%x", OOB)
    a("v_add_u32 v12, 12288, v3")
    a("v_cmp_gt_u32 vcc, s49, v3")
    a("v_cndmask_b32 v3, v13, v3, vcc")
    a("v_cmp_gt_u32 vcc, s49, v12")
    a("v_cndmask_b32 v12, v13, v12, vcc")
    a("s_waitcnt lgkmcnt(1)")
    a("buffer_store_dwordx4 v[4:7], v3, %s, s50 offen", sr(S_WS))
    a("s_waitcnt lgkmcnt(0)")
    a("buffer_store_dwordx4 v[8:11], v12, %s, s50 offen", sr(S_WS))


F_TOP = 0
F_P1 = 1024
F_H = 12288
F_P2 = 16384
LOG2E = f32(1.4426950408889634)

def norm8(a, src, dst, tmp, vm, vrs, s_mask):
    for q in range(4):
        a("v_lshlrev_b32 v%d, 16, v%d", tmp + 2 * q, src + q)
        a("v_and_b32 v%d, s%d, v%d", tmp + 2 * q + 1, s_mask, src + q)
    for q in range(8): a("v_sub_f32 v%d, v%d, v%d", tmp + q, tmp + q, vm)
    for q in range(4): a("v_cvt_pk_bf16_f32 v%d, v%d, v%d", dst + q, tmp + 2 * q, tmp + 2 * q + 1)
    for q in range(4):
        a("v_lshlrev_b32 v%d, 16, v%d", tmp + 2 * q, dst + q)
        a("v_and_b32 v%d, s%d, v%d", tmp + 2 * q + 1, s_mask, dst + q)
    for q in range(8): a("v_mul_f32 v%d, v%d, v%d", tmp + q, tmp + q, vrs)
    for q in range(4): a("v_cvt_pk_bf16_f32 v%d, v%d, v%d", dst + q, tmp + 2 * q, tmp + 2 * q + 1)

def perm_unit(a, src, dst, s_lo, s_hi):
    for q in range(4):
        for h in range(2):
            for p in range(4):
                a("v_perm_b32 v%d, v%d, v%d, s%d", dst + 4 * (2 * q + h) + p, src + 4 * (2 * p + 1) + q, src + 4 * (2 * p) + q, s_hi if h else s_lo)

def bf16r(a, v, s_mask):
    a("v_cvt_pk_bf16_f32 v%d, v%d, v%d", v, v, v)
    a("v_and_b32 v%d, s%d, v%d", v, s_mask, v)

def ffn_role(a):
    a("s_sub_u32 s44, s5, 24")
    a("s_lshl_b32 s44, s44, 3")
    a("s_add_u32 s44, s44, s4")
    srd(a, S_D, P_D, 1536 * 1280)
    a("v_lshrrev_b32 v3, 4, v2")
    a("v_and_b32 v6, 15, v2")
    a("s_mov_b32 s46, 0x05040100")
    a("s_mov_b32 s47, 0x07060302")
    a("s_cmp_ge_u32 s3, 10")
    a("s_cbranch_scc1 FF_top")
    B0, B1, B2, B3 = 32, 64, 96, 128
    a("v_cmp_gt_u32 vcc, 8, v6")
    a("v_mov_b32 v8, s%d", P_U); a("v_mov_b32 v9, s%d", P_U + 1)
    a("v_mov_b32 v10, s%d", P_G); a("v_mov_b32 v11, s%d", P_G + 1)
    a("v_cndmask_b32 v8, v8, v10, vcc")
    a("v_cndmask_b32 v9, v9, v11, vcc")
    a("s_lshl_b32 s48, s3, 6")
    a("v_lshl_add_u32 v10, v3, 3, s48")
    a("v_mul_u32_u24 v10, 3072, v10")
    a("v_and_b32 v11, 7, v6")
    a("v_lshl_add_u32 v10, v11, 4, v10")
    a("s_lshl_b32 s48, s44, 7")
    a("v_add_u32 v10, s48, v10")
    a("v_add_co_u32 v8, vcc, v8, v10")
    a("v_addc_co_u32 v9, vcc, 0, v9, vcc")
    for u in range(2):
        for jp in range(4):
            for h in range(2):
                a("global_load_dwordx4 %s, v[8:9], off offset:%d", vr((B1, B2)[u] + 4 * (2 * jp + h), 4), 3072 * h)
            if not (u == 1 and jp == 3):
                step = 6144 if jp < 3 else 6144 + 24 * 3072
                a("v_add_co_u32 v8, vcc, 0x%x, v8", step)
                a("v_addc_co_u32 v9, vcc, 0, v9, vcc")
    a("s_cmp_ge_u32 s3, 5")
    a("s_cselect_b32 s49, 1, 0")
    a("s_mul_i32 s48, s49, 5")
    a("s_sub_u32 s48, s3, s48")
    a("s_lshl_b32 s50, s44, 6")
    a("s_lshl_b32 s51, s49, 5")
    a("s_add_u32 s50, s50, s51")
    a("s_mul_i32 s50, s50, 1280")
    a("s_lshl_b32 s51, s48, 8")
    a("s_add_u32 s50, s50, s51")
    a("s_add_u32 s51, s50, 5120")
    a("v_mul_u32_u24 v10, %d, v3", 8 * 1280)
    a("v_lshl_add_u32 v10, v6, 4, v10")
    for j in range(8):
        a("buffer_load_dwordx4 %s, v10, %s, s%d offen offset:%d", vr(B3 + 4 * j, 4), sr(S_D), 50 + j // 4, (j % 4) * 1280)
    a("s_waitcnt vmcnt(16)")
    perm_unit(a, B1, B0, 46, 47)
    a("s_waitcnt vmcnt(8)")
    perm_unit(a, B2, B1, 46, 47)
    a("s_waitcnt vmcnt(0)")
    perm_unit(a, B3, B2, 46, 47)
    a("s_branch FF_b1")
    a.label("FF_top")
    a("s_cmp_lg_u32 s3, 10")
    a("s_cbranch_scc1 FF_b1")
    a("v_lshlrev_b32 v8, 4, v2")
    a("s_mov_b32 s48, 0x%x", KEY_OFF)
    for i in range(16):
        if i % 4 == 0 and i: a("s_add_u32 s48, s48, 4096")
        a("buffer_load_dwordx4 %s, v8, %s, s48 offen offset:%d sc1", vr(32 + 4 * i, 4), sr(S_WS), (i % 4) * 1024)
    a("v_mov_b32 v10, 0"); a("v_mov_b32 v11, 0")
    a("s_waitcnt vmcnt(0)")
    for i in range(32):
        a("v_med3_u32 v11, v10, v11, v%d", 32 + 2 * i)
        a("v_max_u32 v10, v10, v%d", 32 + 2 * i)
    a("v_mov_b32 v12, v10")
    wave_umax(a, 12, 48)
    a("v_cmp_eq_u32 vcc, s48, v10")
    a("v_cndmask_b32 v12, v10, v11, vcc")
    wave_umax(a, 12, 49)
    a("v_mov_b32 v12, s48"); a("v_mov_b32 v13, s49")
    for v in (12, 13):
        a("v_and_b32 v%d, s7, v%d", v, v)
        a("v_ashrrev_i32 v14, 31, v%d", v)
        a("v_not_b32 v14, v14")
        a("v_or_b32 v14, 0x80000000, v14")
        a("v_xor_b32 v%d, v%d, v14", v, v)
        a("v_and_b32 v%d, s7, v%d", v, v)
        a("v_mul_f32 v%d, 0x%x, v%d", v, f32(-1.4426950408889634), v)
        a("v_exp_f32 v%d, v%d", v, v)
        a("v_add_f32 v%d, 1.0, v%d", v, v)
        a("v_rcp_f32 v%d, v%d", v, v)
    a("v_cvt_pk_bf16_f32 v18, v12, v13")
    a("s_and_b32 s48, s48, 0xffff")
    a("s_lshl_b32 s49, s49, 16")
    a("s_or_b32 s48, s48, s49")
    a("v_mov_b32 v16, s48"); a("v_mov_b32 v17, 0"); a("v_mov_b32 v19, 0")
    a("v_mov_b32 v8, %d", F_TOP)
    a("s_mov_b64 exec, 1")
    a("ds_write_b128 v8, v[16:19]")
    a("s_cmp_lg_u32 s44, 0")
    a("s_cbranch_scc1 FF_notop")
    a("v_mov_b32 v8, 0x%x", TOP_OFF)
    a("buffer_store_dwordx4 v[16:19], v8, %s, 0 offen sc1", sr(S_WS))
    a.label("FF_notop")
    a("s_mov_b64 exec, -1")
    a("s_waitcnt lgkmcnt(0)")
    a.label("FF_b1")
    a("s_barrier")
    a("s_cmp_ge_u32 s3, 10")
    a("s_cbranch_scc1 FF_b2")
    a("v_mov_b32 v8, %d", F_TOP)
    a("ds_read_b32 v9, v8")
    a("v_and_b32 v10, 1, v2")
    a("v_lshlrev_b32 v10, 4, v10")
    a("s_waitcnt lgkmcnt(0)")
    a("v_bfe_u32 v9, v9, v10, 16")
    a("v_lshlrev_b32 v11, 3, v9")
    a("buffer_load_dword v12, v11, %s, 0 offen sc1", sr(S_WS))
    a("v_and_b32 v10, 1023, v9")
    a("v_lshrrev_b32 v9, 10, v9")
    a("v_lshl_add_u32 v9, v10, 1, v9")
    a("v_mul_u32_u24 v9, 1280, v9")
    a("v_lshl_add_u32 v9, v3, 4, v9")
    a("s_lshl_b32 s50, s3, 7")
    a("buffer_load_dwordx4 v[16:19], v9, %s, s50 offen", sr(S_X))
    a("buffer_load_dwordx4 v[20:23], v9, %s, s50 offen offset:64", sr(S_X))
    a("s_waitcnt vmcnt(2)")
    a("v_and_b32 v13, s7, v12")
    a("v_rcp_f32 v13, v13")
    a("v_lshlrev_b32 v12, 16, v12")
    a("s_waitcnt vmcnt(1)")
    norm8(a, 16, 16, 24, 12, 13, 7)
    for t in range(8):
        a("v_mfma_f32_16x16x32_bf16 %s, %s, v[16:19], 0", vr(B3 + 4 * t, 4), vr(B0 + 4 * t, 4))
    a("s_waitcnt vmcnt(0)")
    norm8(a, 20, 20, 24, 12, 13, 7)
    for t in range(8):
        a("v_mfma_f32_16x16x32_bf16 %s, %s, v[20:23], %s", vr(B3 + 4 * t, 4), vr(B1 + 4 * t, 4), vr(B3 + 4 * t, 4))
    a("s_lshl_b32 s50, s3, 10")
    a("s_add_u32 s50, s50, %d", F_P1)
    a("v_lshlrev_b32 v8, 9, v6")
    a("v_lshl_add_u32 v8, v3, 4, v8")
    a("v_add_u32 v8, s50, v8")
    smov64(a, 52, 0x0003000300030003)
    a("s_mov_b64 exec, s[52:53]")
    for t in range(8):
        a("ds_write_b128 v8, %s offset:%d", vr(B3 + 4 * t, 4), t * 64)
    a("s_mov_b64 exec, -1")
    a("s_waitcnt lgkmcnt(0)")
    a.label("FF_b2")
    a("s_barrier")
    a("s_cmp_ge_u32 s3, 2")
    a("s_cbranch_scc1 FF_b3")
    a("v_and_b32 v8, 7, v2")
    a("v_lshlrev_b32 v8, 4, v8")
    a("v_lshrrev_b32 v9, 3, v2")
    a("v_add_lshl_u32 v8, v8, v9, 2")
    a("s_lshl_b32 s50, s3, 9")
    a("s_add_u32 s50, s50, %d", F_P1)
    a("v_add_u32 v8, s50, v8")
    a("v_add_u32 v9, 32, v8")
    for i in range(5):
        a("ds_read2st64_b32 %s, v8 offset0:%d offset1:%d", vr(B3 + 2 * i, 2), 8 * i, 8 * i + 4)
        a("ds_read2st64_b32 %s, v9 offset0:%d offset1:%d", vr(B3 + 10 + 2 * i, 2), 8 * i, 8 * i + 4)
    a("s_waitcnt lgkmcnt(0)")
    for i in range(1, 10):
        a("v_add_f32 v%d, v%d, v%d", B3, B3, B3 + i)
        a("v_add_f32 v%d, v%d, v%d", B3 + 10, B3 + 10, B3 + 10 + i)
    bf16r(a, B3, 7); bf16r(a, B3 + 10, 7)
    a("v_mul_f32 v10, 0x%x, v%d", f32(-1.4426950408889634), B3)
    a("v_exp_f32 v10, v10")
    a("v_add_f32 v10, 1.0, v10")
    a("v_rcp_f32 v10, v10")
    a("v_mul_f32 v10, v10, v%d", B3)
    bf16r(a, 10, 7)
    a("v_mul_f32 v10, v10, v%d", B3 + 10)
    a("v_cvt_pk_bf16_f32 v10, v10, v10")
    a("s_lshl_b32 s50, s3, 7")
    a("s_add_u32 s50, s50, %d", F_H)
    a("v_lshl_add_u32 v8, v2, 1, s50")
    a("ds_write_b16 v8, v10")
    a("s_waitcnt lgkmcnt(0)")
    a.label("FF_b3")
    a("s_barrier")
    a("s_cmp_ge_u32 s3, 10")
    a("s_cbranch_scc1 FF_b4")
    a("v_and_b32 v8, 1, v2")
    a("v_lshlrev_b32 v8, 7, v8")
    a("v_lshl_add_u32 v8, v3, 4, v8")
    a("s_lshl_b32 s50, s49, 6")
    a("s_add_u32 s50, s50, %d", F_H)
    a("v_add_u32 v8, s50, v8")
    a("ds_read_b128 v[16:19], v8")
    a("s_mul_i32 s50, s49, 5120")
    a("s_lshl_b32 s51, s48, 9")
    a("s_add_u32 s50, s50, s51")
    a("s_add_u32 s50, s50, %d", F_P2)
    a("v_mul_u32_u24 v8, 2560, v6")
    a("v_lshl_add_u32 v8, v3, 4, v8")
    a("v_add_u32 v8, s50, v8")
    a("s_waitcnt lgkmcnt(0)")
    for t in range(8):
        a("v_mfma_f32_16x16x32_bf16 %s, %s, v[16:19], 0", vr(B3 + 4 * t, 4), vr(B2 + 4 * t, 4))
    a("s_mov_b64 exec, s[52:53]")
    for t in range(8):
        a("ds_write_b128 v8, %s offset:%d", vr(B3 + 4 * t, 4), t * 64)
    a("s_mov_b64 exec, -1")
    a("s_waitcnt lgkmcnt(0)")
    a.label("FF_b4")
    a("s_barrier")
    a("s_cmp_ge_u32 s3, 10")
    a("s_cbranch_scc1 FF_end")
    a("v_and_b32 v8, 3, v2")
    a("v_lshlrev_b32 v8, 5, v8")
    a("v_lshrrev_b32 v9, 2, v2")
    a("v_add_lshl_u32 v8, v8, v9, 2")
    a("s_lshl_b32 s50, s3, 9")
    a("s_add_u32 s50, s50, %d", F_P2)
    a("v_add_u32 v8, s50, v8")
    a("v_add_u32 v9, 5120, v8")
    a("ds_read2_b32 v[10:11], v8 offset0:0 offset1:16")
    a("ds_read2_b32 v[12:13], v9 offset0:0 offset1:16")
    a("s_mul_i32 s50, s44, 10240")
    a("s_add_u32 s50, s50, 0x%x", Y_OFF)
    a("v_lshlrev_b32 v8, 4, v0")
    a("v_mov_b32 v17, 0"); a("v_mov_b32 v19, 0")
    a("s_waitcnt lgkmcnt(0)")
    a("v_add_f32 v16, v10, v12")
    a("v_add_f32 v18, v11, v13")
    a("buffer_store_dwordx4 v[16:19], v8, %s, s50 offen sc1", sr(S_WS))
    a.label("FF_end")

def k1_body():
    a = Asm()
    a("s_cmp_ge_u32 s2, 256")
    a("s_cbranch_scc1 K1_end")
    stamp(a, 0)
    stamp_init(a)
    load_ptrs(a)
    a("v_lshrrev_b32 v1, 6, v0")
    a("v_and_b32 v2, 63, v0")
    a("v_readfirstlane_b32 s3, v1")
    a("s_mov_b32 s7, 0xffff0000")
    p1_decode(a)
    a("s_waitcnt lgkmcnt(0)")
    srd(a, S_X, P_X, 2048 * 1280)
    srd(a, S_WQKV, P_WQKV, 640 * 3840)
    srd(a, S_WS, P_WS, WS_BYTES)
    a("s_cmp_ge_u32 s5, 24")
    a("s_cbranch_scc1 K1_other")
    a("s_cmp_ge_u32 s3, 4")
    a("s_cbranch_scc1 K1_comp")
    p1_loader(a)
    a("s_branch K1_ost")
    a.label("K1_comp")
    a("s_sub_u32 s3, s3, 4")
    p1_compute(a)
    a.label("K1_ost")
    p1_ostore(a)
    stamp(a, 6)
    if STAMPS:
        a("s_waitcnt vmcnt(0)")
        stamp(a, 7)
    stamp_flush(a, [0, 4])
    a("s_branch K1_end")
    a.label("K1_other")
    a("s_cmp_ge_u32 s5, 27")
    a("s_cbranch_scc1 K1_end")
    ffn_role(a)
    a.label("K1_end")
    a("s_endpgm")
    return a


L2_O = 0
L2_X = 65536
LDS2 = 65536 + 49152
S_O = 32

def p2_decode(a, endlabel):
    a("s_and_b32 s4, s2, 7")
    a("s_lshr_b32 s5, s2, 3")
    a("s_cmp_ge_u32 s5, 27")
    a("s_cbranch_scc1 %s", endlabel)
    a("s_mul_i32 s6, s4, 27")
    a("s_add_u32 s6, s6, s5")
    a("s_cmp_ge_u32 s6, 215")
    a("s_cbranch_scc1 %s", endlabel)
    a("s_mul_i32 s45, s6, 205")
    a("s_lshr_b32 s45, s45, 10")
    a("s_mul_i32 s46, s45, 5")
    a("s_sub_u32 s46, s6, s46")
    a("s_and_b32 s47, s3, 3")
    a("s_lshr_b32 s48, s3, 2")

WR = 40
def p2_wo_issue(a):
    a("v_lshrrev_b32 v8, 1, v3")
    a("v_mul_u32_u24 v8, 80, v8")
    a("v_and_b32 v9, 1, v3")
    a("v_lshl_add_u32 v8, v9, 3, v8")
    a("v_mul_u32_u24 v8, 1280, v8")
    a("v_lshl_add_u32 v8, v6, 2, v8")
    a("s_lshl_b32 s50, s46, 8")
    a("s_lshl_b32 s51, s47, 6")
    a("s_add_u32 s50, s50, s51")
    a("v_add_u32 v8, s50, v8")
    a("v_add_u32 v9, 5120, v8")
    a("s_mul_i32 s50, s48, %d", 320 * 1280)
    for ks in range(10):
        for j in range(8):
            a("buffer_load_dword v%d, v%d, %s, s50 offen offset:%d", WR + 8 * (ks + 1) + j, 8 + j // 4, sr(S_WO), (j % 4) * 1280)
        if ks < 9: a("s_add_u32 s50, s50, %d", (16 if ks != 4 else 96) * 1280)

def p2_wo_perm(a, base_cnt):
    a("s_mov_b32 s52, 0x05040100")
    a("s_mov_b32 s53, 0x07060302")
    for ks in range(10):
        a("s_waitcnt vmcnt(%d)", min(63, base_cnt + 8 * (9 - ks)))
        src, dst = WR + 8 * (ks + 1), WR + 8 * ks
        for h in range(2):
            for p in range(4):
                a("v_perm_b32 v%d, v%d, v%d, s%d", dst + 4 * h + p, src + 2 * p + 1, src + 2 * p, 52 + h)

def p2_o_issue(a):
    a("s_mul_i32 s50, s3, %d", 2048 * 160)
    a("s_mul_i32 s51, s45, 7680")
    a("s_add_u32 s50, s50, s51")
    a("s_add_u32 s50, s50, 0x%x", O_OFF)
    a("s_add_u32 s%d, s%d, s50", S_O, P_WS)
    a("s_addc_u32 s%d, s%d, 0", S_O + 1, P_WS + 1)
    a("s_and_b32 s%d, s%d, 0xffff", S_O + 1, S_O + 1)
    a("s_sub_u32 s50, %d, s51", 2048 * 160)
    a("s_min_u32 s%d, s50, 7680", S_O + 2)
    a("s_mov_b32 s%d, 0x20000", S_O + 3)
    a("v_lshlrev_b32 v10, 4, v2")
    a("s_lshl_b32 s50, s3, 13")
    a("s_movk_i32 s51, 4096")
    for hf in range(2):
        a("s_add_u32 m0, s50, %d", L2_O + hf * 4096)
        for i in range(4):
            a("buffer_load_dwordx4 v10, %s, %s offen offset:%d sc1 lds", sr(S_O), "s51" if hf else "0", i * 1024)

XR, XN, TT = 128, 132, 136
def p2_res_issue(a):
    a("s_mul_i32 s50, s45, 48")
    a("s_lshl_b32 s51, s48, 4")
    a("s_add_u32 s54, s50, s51")
    a("v_add_u32 v11, s54, v6")
    a("v_lshlrev_b32 v12, 3, v11")
    a("buffer_load_dword v14, v12, %s, 0 offen sc1", sr(S_WS))
    a("v_and_b32 v12, 1023, v11")
    a("v_lshrrev_b32 v13, 10, v11")
    a("v_lshl_add_u32 v12, v12, 1, v13")
    a("v_mul_u32_u24 v12, 1280, v12")
    a("v_lshl_add_u32 v12, v3, 4, v12")
    a("s_lshl_b32 s50, s46, 8")
    a("s_lshl_b32 s51, s47, 6")
    a("s_add_u32 s55, s50, s51")
    a("v_add_u32 v12, s55, v12")
    a("v_mov_b32 v13, 0x%x", OOB)
    a("v_cmp_gt_u32 vcc, 2048, v11")
    a("v_cndmask_b32 v12, v13, v12, vcc")
    a("buffer_load_dwordx4 %s, v12, %s, 0 offen", vr(XR, 4), sr(S_X))
    a("v_mov_b32 v13, 0x%x", TOP_OFF)
    a("buffer_load_dwordx4 %s, v13, %s, 0 offen sc1", vr(TT + 8, 4), sr(S_WS))

def p2_res_compute(a):
    a("v_and_b32 v15, s7, v14")
    a("v_max_f32 v15, 0x%x, v15", f32(1e-3))
    a("v_rcp_f32 v15, v15")
    a("v_lshlrev_b32 v14, 16, v14")
    norm8(a, XR, XN, TT, 14, 15, 7)
    a("v_readfirstlane_b32 s56, v%d", TT + 8)
    a("v_readfirstlane_b32 s57, v%d", TT + 10)
    for k in range(2):
        skip = a.newlabel("P2_noupd")
        if k == 0:
            a("s_and_b32 s58, s56, 0xffff"); a("s_lshl_b32 s59, s57, 16")
        else:
            a("s_lshr_b32 s58, s56, 16"); a("s_and_b32 s59, s57, 0xffff0000")
        a("s_sub_u32 s50, s58, s54")
        a("s_cmp_ge_u32 s50, 16")
        a("s_cbranch_scc1 %s", skip)
        a("v_mul_u32_u24 v13, %d, v3", 6 * 10240)
        a("v_lshl_add_u32 v13, v6, 4, v13")
        a("s_lshl_b32 s51, s55, 2")
        a("s_add_u32 s51, s51, 0x%x", Y_OFF + k * 5120)
        for n in range(6):
            a("buffer_load_dwordx4 %s, v13, %s, s51 offen sc1", vr(16 + 4 * n, 4), sr(S_WS))
            if n < 5: a("s_add_u32 s51, s51, 10240")
        a("s_waitcnt vmcnt(0)")
        for n in range(1, 6):
            a("v_add_f32 v16, v16, v%d", 16 + 4 * n)
            a("v_add_f32 v18, v18, v%d", 18 + 4 * n)
        for swap in ("v_permlane32_swap_b32", "v_permlane16_swap_b32"):
            a("v_mov_b32 v17, v16"); a("v_mov_b32 v19, v18")
            a("%s v16, v17", swap); a("%s v18, v19", swap)
            a("v_add_f32 v16, v16, v17"); a("v_add_f32 v18, v18, v19")
        bf16r(a, 16, 7); bf16r(a, 18, 7)
        a("v_mul_f32 v16, s59, v16"); a("v_mul_f32 v18, s59, v18")
        a("v_cvt_pk_bf16_f32 v16, v16, v18")
        a("v_lshlrev_b32 v17, 4, v3")
        for r in range(4):
            a("ds_bpermute_b32 v%d, v17, v16 offset:%d", 20 + r, 4 * r)
        a("v_cmp_eq_u32 vcc, s58, v11")
        a("s_waitcnt lgkmcnt(0)")
        for r in range(4):
            a("v_cndmask_b32 v%d, 0, v%d, vcc", 20 + r, 20 + r)
            a("v_lshlrev_b32 v24, 16, v%d", 20 + r)
            a("v_and_b32 v25, s7, v%d", 20 + r)
            a("v_lshlrev_b32 v26, 16, v%d", XN + r)
            a("v_and_b32 v27, s7, v%d", XN + r)
            a("v_add_f32 v24, v24, v26")
            a("v_add_f32 v25, v25, v27")
            a("v_cvt_pk_bf16_f32 v%d, v24, v25", XN + r)
        a.label(skip)

AC2 = 16
OF = 144
def p2_gemm(a):
    a("v_lshrrev_b32 v7, 1, v3")
    a("s_lshl_b32 s50, s48, 2")
    a("v_add_u32 v7, s50, v7")
    a("v_lshlrev_b32 v7, 13, v7")
    a("v_mul_u32_u24 v8, 160, v6")
    a("v_add_u32 v7, v7, v8")
    a("v_and_b32 v8, 1, v3")
    a("v_lshl_add_u32 v7, v8, 4, v7")
    a("s_mul_i32 s50, s48, 2560")
    a("v_add_u32 v8, s50, v7")
    a("v_add_u32 v9, 2560, v8")
    a("s_cmp_eq_u32 s48, 0")
    a("s_cselect_b32 s50, 5120, 0")
    a("v_add_u32 v10, s50, v7")
    def reads(ks):
        for mu in range(3):
            a("ds_read_b128 %s, v%d offset:%d", vr(OF + (ks % 2) * 12 + mu * 4, 4), 8 + mu, L2_O + (ks // 5) * 16384 + (ks % 5) * 32)
    a("s_waitcnt vmcnt(0)")
    a("s_barrier")
    reads(0)
    for ks in range(10):
        if ks < 9:
            reads(ks + 1)
            a("s_waitcnt lgkmcnt(3)")
        else:
            a("s_waitcnt lgkmcnt(0)")
        for mu in range(3):
            for e in range(2):
                d = vr(AC2 + (mu * 2 + e) * 4, 4)
                a("v_mfma_f32_16x16x32_bf16 %s, %s, %s, %s", d, vr(WR + 8 * ks + 4 * e, 4), vr(OF + (ks % 2) * 12 + mu * 4, 4), d if ks else "0")
    a("s_lshl_b32 s50, s47, 1")
    a("s_add_u32 s50, s50, s48")
    a("s_mul_i32 s50, s50, 6144")
    a("s_add_u32 s50, s50, %d", L2_X)
    a("v_lshl_add_u32 v7, v2, 4, s50")
    a("s_add_u32 s51, s48, 1")
    a("s_lshl_b32 s51, s51, 11")
    a("v_add_u32 v8, s51, v7")
    a("s_cmp_eq_u32 s48, 0")
    a("s_cselect_b32 s51, 4096, 0")
    a("v_add_u32 v9, s51, v7")
    for mu in (1, 2):
        for e in range(2):
            a("ds_write_b128 v%d, %s offset:%d", 7 + mu, vr(AC2 + (mu * 2 + e) * 4, 4), e * 1024)
    a("s_waitcnt lgkmcnt(0)")

def p2_final(a):
    a("s_mul_i32 s50, s47, 12288")
    a("s_lshl_b32 s51, s48, 11")
    a("s_add_u32 s50, s50, s51")
    a("s_add_u32 s50, s50, %d", L2_X)
    a("s_cmp_eq_u32 s48, 0")
    a("s_cselect_b32 s51, 6144, 0")
    a("s_add_u32 s50, s50, s51")
    a("v_lshl_add_u32 v7, v2, 4, s50")
    a("s_barrier")
    a("ds_read_b128 v[24:27], v7")
    a("ds_read_b128 v[28:31], v7 offset:1024")
    a("s_cmp_lt_u32 s48, 2")
    a("s_cbranch_scc1 P2_own")
    a("ds_read_b128 v[16:19], v7 offset:6144")
    a("ds_read_b128 v[20:23], v7 offset:7168")
    a.label("P2_own")
    a("s_waitcnt lgkmcnt(0)")
    for i in range(8): a("v_add_f32 v%d, v%d, v%d", 16 + i, 16 + i, 24 + i)
    for r in range(4): a("v_cvt_pk_bf16_f32 v%d, v%d, v%d", 24 + r, 16 + r, 20 + r)
    for src in (XR, XN):
        for r in range(4):
            a("v_lshlrev_b32 v16, 16, v%d", 24 + r)
            a("v_and_b32 v17, s7, v%d", 24 + r)
            a("v_lshlrev_b32 v18, 16, v%d", src + r)
            a("v_and_b32 v19, s7, v%d", src + r)
            a("v_add_f32 v16, v16, v18")
            a("v_add_f32 v17, v17, v19")
            a("v_cvt_pk_bf16_f32 v%d, v16, v17", 24 + r)
    a("buffer_store_dwordx4 v[24:27], v12, %s, 0 offen", sr(S_OUT))

def k2_body():
    a = Asm()
    stamp(a, 0)
    stamp_init(a)
    load_ptrs(a)
    a("v_lshrrev_b32 v1, 6, v0")
    a("v_and_b32 v2, 63, v0")
    a("v_readfirstlane_b32 s3, v1")
    a("s_mov_b32 s7, 0xffff0000")
    a("v_lshrrev_b32 v3, 4, v2")
    a("v_and_b32 v6, 15, v2")
    p2_decode(a, "K2_end")
    a("s_waitcnt lgkmcnt(0)")
    srd(a, S_X, P_X, 2048 * 1280)
    srd(a, S_WO, P_WO, 640 * 1280)
    srd(a, S_WS, P_WS, WS_BYTES)
    srd(a, S_OUT, P_OUT, 2048 * 1280)
    p2_res_issue(a)
    a("s_cmp_ge_u32 s3, 8")
    a("s_cbranch_scc1 K2_fin")
    stamp(a, 1)
    p2_o_issue(a)
    p2_wo_issue(a)
    stamp(a, 2)
    p2_wo_perm(a, 0)
    stamp(a, 3)
    p2_res_compute(a)
    stamp(a, 4)
    p2_gemm(a)
    stamp(a, 5)
    a("s_branch K2_final")
    a.label("K2_fin")
    a("s_waitcnt vmcnt(0)")
    p2_res_compute(a)
    a("s_barrier")
    a.label("K2_final")
    p2_final(a)
    stamp(a, 6)
    if STAMPS:
        a("s_waitcnt vmcnt(0)")
        stamp(a, 7)
    stamp_flush(a, [0, 7], 0x100000)
    a.label("K2_end")
    a("s_endpgm")
    return a

if __name__ == "__main__":
    if "stamps" in sys.argv: STAMPS = True
    if "cyc" in sys.argv: CYC = True
    k0 = hazard.fix(k0_body().text())
    k1 = hazard.fix(k1_body().text())
    k2 = hazard.fix(k2_body().text())
    open("v0.s", "w").write(module([("k0_kernel", 256, 512, 0), ("k1_kernel", 256, 768, LDS1), ("k2_kernel", 216, 768, LDS2)],
        [("k0_kernel", k0, 48, 96, None), ("k1_kernel", k1, 168, 102, None), ("k2_kernel", k2, 168, 102, None)]))
```

```python
import sys
import gen
from gen import (f32, sr, vr, srd, wave_umax, norm8, perm_unit, bf16r, smov64, stamp_init, stamp_flush, Asm, module, NAME,
                 S_X, S_WQKV, S_WS, S_WO, S_OUT, S_WR, S_D, P_X, P_WQKV, P_WO, P_WR, P_G, P_U, P_D, P_OUT, P_WS,
                 WS_BYTES, OOB, TOP_OFF, Y_OFF, O_OFF, NEG, CEXP)
import hazard, align

OPT = dict(wo1=8, xnpos=0, latewo=0, align=1, nodma=0, S0=3, spin=1 << 18, thr=1, codepf=1, nlines=228, fsleep=2, ysleep=24, sw0=0, sw1=4, diag=0, nomf=0)
def stamp(a, i, L=False):
    if L and OPT["diag"]:
        if i == 3: gen.stamp(a, 6)
        return
    gen.stamp(a, i)

EPOCH_OFF = 0x18000
UPD_OFF = 0x1a000
FLAG_OFF = 0x60000
KEY2_OFF = 0x8000
L_W = 0
L_X = 65536
L_VT = 90112
L_OST = L_VT + 18432
L_TG = L_OST + 15360
assert L_TG + 64 <= 131072
LDS_ALL = 163840
TAG = 60
S_O = 32
sNP, sT0, sCOL = 40, 42, 43
DUMP = 255

def load_ptrs(a):
    a("s_load_dwordx16 s[64:79], s[0:1], 0")
    a("s_load_dwordx2 s[80:81], s[0:1], 64")
    a("s_load_dwordx2 s[84:85], s[0:1], 80")
def poll_begin(a, name):
    a("s_mov_b32 s59, %d", OPT["spin"])
    a.label(name)
def poll_end(a, name, done, sleep=1):
    a("s_cbranch_vccz %s", done)
    if sleep: a("s_sleep %d", sleep)
    a("s_sub_u32 s59, s59, 1")
    a("s_cmp_lg_u32 s59, 0")
    a("s_cbranch_scc1 %s", name)
    a.label(done)
def epoch_load(a):
    a("s_add_u32 s48, s%d, 0x%x", P_WS, EPOCH_OFF)
    a("s_addc_u32 s49, s%d, 0", P_WS + 1)
    a("s_load_dword s%d, s[48:49], 0", TAG)
def tag_ready(a):
    a("s_waitcnt lgkmcnt(0)")
    a("s_add_u32 s%d, s%d, 1", TAG, TAG)

def entry(a):
    a("s_cmp_ge_u32 s2, 256")
    a("s_cbranch_scc1 K_end")
    stamp(a, 0)
    load_ptrs(a)
    if OPT["codepf"]:
        a("s_cmp_lt_u32 s2, 192")
        a("s_cbranch_scc1 EN_nopf")
        a("s_getpc_b64 s[48:49]")
        a("s_and_b32 s48, s48, 0xffffff00")
        a("v_lshlrev_b32 v7, 7, v0")
        a("v_cmp_gt_u32 vcc, %d, v0", OPT["nlines"])
        a("s_and_saveexec_b64 s[50:51], vcc")
        a("s_cbranch_execz EN_nopf2")
        a("global_load_dword v%d, v7, s[48:49]", DUMP)
        a.label("EN_nopf2")
        a("s_mov_b64 exec, s[50:51]")
        a.label("EN_nopf")
    stamp_init(a)
    a("v_lshrrev_b32 v1, 6, v0")
    a("v_and_b32 v2, 63, v0")
    a("v_readfirstlane_b32 s3, v1")
    a("s_mov_b32 s7, 0xffff0000")
    a("s_and_b32 s4, s2, 7")
    a("s_lshr_b32 s5, s2, 3")
    a("s_and_b32 s44, s4, 1")
    a("s_lshl_b32 s44, s44, 2")
    a("s_and_b32 s6, s5, 3")
    a("s_add_u32 s44, s44, s6")
    a("s_lshr_b32 s47, s4, 1")
    a("s_mul_i32 s47, s47, 6")
    a("s_lshr_b32 s6, s5, 2")
    a("s_add_u32 s47, s47, s6")
    a("s_lshr_b32 s45, s4, 2")
    a("s_mul_i32 s6, s45, 12")
    a("s_sub_u32 s6, s47, s6")
    a("s_mul_i32 s46, s6, 88")
    a("v_lshrrev_b32 v3, 4, v2")
    a("v_bfe_u32 v4, v2, 2, 2")
    a("v_and_b32 v5, 3, v2")
    a("v_and_b32 v6, 15, v2")

def p2_scalars(a):
    a("s_mul_i32 s6, s4, 27")
    a("s_add_u32 s6, s6, s5")
    a("s_mul_i32 s61, s6, 205")
    a("s_lshr_b32 s61, s61, 10")
    a("s_mul_i32 s62, s61, 5")
    a("s_sub_u32 s62, s6, s62")
    a("s_cmp_lt_u32 s6, 215")
    a("s_cselect_b32 s63, 1, 0")
    a("s_cmp_lt_u32 s5, 27")
    a("s_cselect_b32 s63, s63, 0")
    a("s_and_b32 s%d, s3, 3", sNP)
    a("s_mul_i32 s%d, s61, 48", sT0)
    a("s_lshl_b32 s%d, s62, 8", sCOL)
    a("s_lshl_b32 s6, s%d, 6", sNP)
    a("s_add_u32 s%d, s%d, s6", sCOL, sCOL)

def pf_setup(a, s_unit, uid):
    lx, le = "PF_x%s" % uid, "PF_e%s" % uid
    a("s_cmp_ge_u32 s%d, 15", s_unit)
    a("s_cbranch_scc1 %s", lx)
    a("s_lshl_b32 s48, s%d, 6", s_unit)
    a("v_add_u32 v9, s48, v2")
    a("v_mul_u32_u24 v10, 4370, v9")
    a("v_lshrrev_b32 v10, 16, v10")
    a("v_mul_u32_u24 v11, 15, v10")
    a("v_sub_u32 v9, v9, v11")
    a("v_mul_u32_u24 v11, 52, v9")
    a("v_lshrrev_b32 v11, 8, v11")
    a("v_mul_u32_u24 v10, 3840, v10")
    a("v_mul_u32_u24 v11, 640, v11")
    a("v_lshl_add_u32 v8, v9, 7, v10")
    a("s_and_b32 s48, s4, 1")
    a("s_mul_i32 s48, s48, 640")
    a("v_add3_u32 v8, v8, v11, s48")
    a("s_mov_b32 s50, 1")
    a("s_branch %s", le)
    a.label(lx)
    a("s_sub_u32 s48, s%d, 15", s_unit)
    a("s_lshl_b32 s48, s48, 6")
    a("s_xor_b32 s49, s4, 1")
    a("s_and_b32 s49, s49, 3")
    a("s_lshl_b32 s49, s49, 8")
    a("s_add_u32 s48, s48, s49")
    a("s_cmp_eq_u32 s%d, 19", s_unit)
    a("s_cselect_b32 s48, 512, s48")
    a("s_cselect_b32 s49, 15, 63")
    a("v_and_b32 v9, s49, v2")
    a("v_add_u32 v9, s48, v9")
    a("v_mul_u32_u24 v9, 2560, v9")
    a("s_mul_i32 s48, s45, 1280")
    a("v_add_u32 v8, s48, v9")
    a("s_mov_b32 s50, 0")
    a.label(le)

def pf_issue(a, s_stage, uid):
    lx, le = "PI_x%s" % uid, "PI_e%s" % uid
    a("s_cmp_eq_u32 s50, 0")
    a("s_cbranch_scc1 %s", lx)
    a("s_mul_i32 s48, s%d, %d", s_stage, 64 * 3840)
    a("buffer_load_dword v%d, v8, %s, s48 offen", DUMP, sr(S_WQKV))
    a("s_branch %s", le)
    a.label(lx)
    a("s_lshl_b32 s48, s%d, 7", s_stage)
    a("buffer_load_dword v%d, v8, %s, s48 offen", DUMP, sr(S_X))
    a.label(le)

def row16_sum(a, v):
    for d in ("quad_perm:[1,0,3,2]", "quad_perm:[2,3,0,1]", "row_half_mirror", "row_mirror"):
        a("v_add_f32_dpp v%d, v%d, v%d %s row_mask:0xf bank_mask:0xf", v, v, v, d)

def rpass(a):
    a("s_waitcnt lgkmcnt(0)")
    srd(a, S_X, P_X, 2048 * 1280)
    epoch_load(a)
    a("s_and_b32 s52, s4, 3")
    a("s_lshl_b32 s52, s52, 8")
    a("s_sub_u32 s53, s5, 24")
    a("s_lshl_b32 s53, s53, 5")
    a("s_add_u32 s52, s52, s53")
    a("s_sub_u32 s53, s3, 4")
    a("s_lshl_b32 s53, s53, 3")
    a("s_add_u32 s52, s52, s53")
    a("s_mul_i32 s53, s52, 2560")
    a("s_mul_i32 s54, s45, 1280")
    a("s_add_u32 s53, s53, s54")
    a("s_add_u32 s54, s53, %d", 4 * 2560)
    a("v_lshlrev_b32 v7, 4, v6")
    a("v_mul_u32_u24 v8, 2560, v3")
    a("v_add_u32 v8, v8, v7")
    X0, X1, WRr, F = 16, 36, 56, 76
    for p, X in enumerate((X0, X1)):
        for n in range(5):
            a("buffer_load_dwordx4 %s, v8, %s, s%d offen offset:%d", vr(X + 4 * n, 4), sr(S_X), 53 + p, 256 * n)
    srd(a, S_WR, P_WR, 1280)
    for n in range(5):
        a("buffer_load_dwordx4 %s, v7, %s, 0 offen offset:%d", vr(WRr + 4 * n, 4), sr(S_WR), 256 * n)
    srd(a, S_WS, P_WS, WS_BYTES)
    a("s_lshl_b32 s55, s45, 10")
    a("s_add_u32 s55, s55, s52")
    a("s_mov_b32 s56, 0x%x", f32(1.0 / 640))
    T = 120
    for p, X in enumerate((X0, X1)):
        if p == 0: a("s_waitcnt vmcnt(10)")
        for d in range(20):
            a("v_lshlrev_b32 v%d, 16, v%d", F + 2 * d, X + d)
            a("v_and_b32 v%d, s7, v%d", F + 2 * d + 1, X + d)
        a("v_pk_add_f32 %s, %s, %s", vr(T, 2), vr(F, 2), vr(F + 2, 2))
        a("v_pk_add_f32 %s, %s, %s", vr(T + 2, 2), vr(F + 4, 2), vr(F + 6, 2))
        for d in range(4, 20):
            r = T + 2 * (d % 2)
            a("v_pk_add_f32 %s, %s, %s", vr(r, 2), vr(r, 2), vr(F + 2 * d, 2))
        a("v_pk_add_f32 %s, %s, %s", vr(T, 2), vr(T, 2), vr(T + 2, 2))
        a("v_add_f32 v%d, v%d, v%d", T, T, T + 1)
        row16_sum(a, T)
        a("v_mul_f32 v%d, s56, v%d", T + 4, T)
        for d in range(20):
            r = T + 6 + 2 * (d % 2)
            a("v_pk_add_f32 %s, %s, %s op_sel_hi:[1,0] neg_lo:[0,1] neg_hi:[0,1]", vr(r, 2), vr(F + 2 * d, 2), vr(T + 4, 2))
            q = T + 2 * (d % 2)
            if d < 2: a("v_pk_mul_f32 %s, %s, %s", vr(q, 2), vr(r, 2), vr(r, 2))
            else: a("v_pk_fma_f32 %s, %s, %s, %s", vr(q, 2), vr(r, 2), vr(r, 2), vr(q, 2))
        a("v_pk_add_f32 %s, %s, %s", vr(T, 2), vr(T, 2), vr(T + 2, 2))
        a("v_add_f32 v%d, v%d, v%d", T, T, T + 1)
        row16_sum(a, T)
        a("v_mul_f32 v%d, s56, v%d", T, T)
        a("v_cvt_pk_bf16_f32 v%d, v%d, v%d", T + 2, T + 4, T)
        a("v_and_b32 v%d, s7, v%d", T, T + 2)
        a("v_add_f32 v%d, 0x%x, v%d", T, f32(1e-5), T)
        bf16r(a, T, 7)
        a("v_sqrt_f32 v%d, v%d", T, T)
        bf16r(a, T, 7)
        a("v_rcp_f32 v%d, v%d", T + 5, T)
        a("v_lshlrev_b32 v%d, 16, v%d", T + 4, T + 2)
        a("v_bfi_b32 v%d, s7, v%d, v%d", 10 + 2 * p, T, T + 2)
        for d in range(20):
            a("v_pk_add_f32 %s, %s, %s op_sel_hi:[1,0] neg_lo:[0,1] neg_hi:[0,1]", vr(F + 2 * d, 2), vr(F + 2 * d, 2), vr(T + 4, 2))
        for d in range(20):
            a("v_cvt_pk_bf16_f32 v%d, v%d, v%d", X + d, F + 2 * d, F + 2 * d + 1)
        for d in range(20):
            a("v_lshlrev_b32 v%d, 16, v%d", F + 2 * d, X + d)
            a("v_and_b32 v%d, s7, v%d", F + 2 * d + 1, X + d)
        for d in range(20):
            a("v_pk_mul_f32 %s, %s, %s op_sel:[0,1]", vr(F + 2 * d, 2), vr(F + 2 * d, 2), vr(T + 4, 2))
        for d in range(20):
            a("v_cvt_pk_bf16_f32 v%d, v%d, v%d", X + d, F + 2 * d, F + 2 * d + 1)
        if p == 0: a("s_waitcnt vmcnt(0)")
        a("v_mov_b32 v%d, 0", T)
        a("v_mov_b32 v%d, 0", T + 1)
        for d in range(20):
            a("v_dot2c_f32_bf16 v%d, v%d, v%d", T + d % 2, X + d, WRr + d)
        a("v_add_f32 v%d, v%d, v%d", T, T, T + 1)
        row16_sum(a, T)
        a("v_cvt_pk_bf16_f32 v%d, v%d, v%d", T, T, T)
        a("v_ashrrev_i32 v%d, 31, v%d", T + 1, T)
        a("v_or_b32 v%d, 0x80000000, v%d", T + 1, T + 1)
        a("v_xor_b32 v%d, v%d, v%d", T, T, T + 1)
        a("v_add_u32 v%d, s55, v3", T + 1)
        if p: a("v_add_u32 v%d, 4, v%d", T + 1, T + 1)
        a("v_bfi_b32 v%d, s7, v%d, v%d", 14 + p, T, T + 1)
        if p == 0:
            tag_ready(a)
            a("v_mov_b32 v11, s%d", TAG)
            a("v_mov_b32 v13, s%d", TAG)
            a("v_lshlrev_b32 v9, 3, v3")
            a("s_lshl_b32 s57, s55, 3")
            smov64(a, 52, 0x0001000100010001)
        a("s_mov_b64 exec, s[52:53]")
        a("buffer_store_dwordx2 %s, v9, %s, s57 offen offset:%d sc1", vr(10 + 2 * p, 2), sr(S_WS), 32 * p)
        a("s_mov_b64 exec, -1")
    a("v_max_u32 v16, v14, v15")
    a("v_min_u32 v18, v14, v15")
    for swap in ("v_permlane32_swap_b32", "v_permlane16_swap_b32"):
        a("v_mov_b32 v20, v16"); a("v_mov_b32 v21, v18")
        a("%s v16, v20", swap); a("%s v18, v21", swap)
        a("v_min_u32 v22, v16, v20")
        a("v_max_u32 v16, v16, v20")
        a("v_max3_u32 v18, v18, v21, v22")
    a("v_mov_b32 v17, s%d", TAG)
    a("v_mov_b32 v19, s%d", TAG)
    a("s_lshl_b32 s57, s55, 1")
    a("s_add_u32 s57, s57, 0x%x", KEY2_OFF)
    a("s_mov_b64 exec, 1")
    a("buffer_store_dwordx4 v[16:19], off, %s, s57 sc1", sr(S_WS))
    a("s_mov_b64 exec, -1")

vWO, vFL, vX, vW, vO = 40, 41, 44, 47, 56
def wo_setup(a):
    srd(a, S_WO, P_WO, 640 * 1280)
    a("s_lshr_b32 s48, s3, 1")
    a("s_lshl_b32 s48, s48, 2")
    a("v_add_u32 v50, s48, v3")
    a("v_lshlrev_b32 v50, 1, v50")
    a("v_sub_u32 v50, v2, v50")
    a("v_and_b32 v50, 15, v50")
    a("s_lshl_b32 s48, s3, 2")
    a("v_add_u32 v51, s48, v3")
    a("v_mul_u32_u24 v51, 1280, v51")
    a("v_lshl_add_u32 v51, v50, 4, v51")
    a("s_lshl_b32 s48, s62, 8")
    a("v_add_u32 v%d, s48, v51", vWO)
    a("s_lshl_b32 s58, s3, 10")

def wo_issue(a, units):
    for u in units:
        aa, c = u // 5, u % 5
        for h in range(2):
            a("s_add_u32 m0, s58, %d", u * 8192 + h * 4096)
            a("s_mov_b32 s48, %d", (aa * 160 + c * 16 + h * 80) * 1280)
            a("buffer_load_dwordx4 v%d, %s, s48 offen lds", vWO, sr(S_WO))

def l_setup(a):
    srd(a, S_WS, P_WS, WS_BYTES)
    srd(a, S_OUT, P_OUT, 2048 * 1280)
    wo_setup(a)
    p2_waddr(a, 20, False)
    a("s_mov_b32 s50, s%d", sT0)
    a("s_add_u32 s51, s50, 47")
    a("s_min_u32 s51, s51, 2047")
    for sreg in (50, 51):
        a("s_lshr_b32 s6, s%d, 10", sreg)
        a("s_mul_i32 s6, s6, 12")
        a("s_and_b32 s%d, s%d, 1023", sreg, sreg)
        a("s_mul_i32 s%d, s%d, 745", sreg, sreg)
        a("s_lshr_b32 s%d, s%d, 16", sreg, sreg)
        a("s_add_u32 s%d, s%d, s6", sreg, sreg)
    a("s_lshl_b32 s48, s3, 1")
    a("s_sub_u32 s51, s51, s50")
    a("s_lshl_b32 s51, s51, 10")
    a("v_and_b32 v50, 1, v2")
    a("v_mul_u32_u24 v50, s51, v50")
    a("v_bfe_u32 v51, v2, 1, 1")
    a("v_lshl_add_u32 v50, v51, 7, v50")
    a("s_lshl_b32 s50, s50, 3")
    a("s_add_u32 s50, s50, s48")
    a("s_lshl_b32 s50, s50, 7")
    a("s_add_u32 s50, s50, 0x%x", FLAG_OFF)
    a("v_add_u32 v%d, s50, v50", vFL)
    a("s_mul_i32 s50, s48, %d", 2048 * 160)
    a("s_mul_i32 s51, s61, 7680")
    a("s_add_u32 s50, s50, s51")
    a("s_add_u32 s50, s50, 0x%x", O_OFF)
    a("v_lshl_add_u32 v50, v2, 4, s50")
    D2 = 2048 * 160 - 2560
    a("v_mov_b32 v%d, v50", vO)
    a("v_add_u32 v%d, 1024, v50", vO + 1)
    a("v_add_u32 v51, 2048, v50")
    a("v_add_u32 v52, 0x%x, v50", 2048 + D2)
    a("v_cmp_gt_u32 vcc, 32, v2")
    a("v_cndmask_b32 v%d, v52, v51, vcc", vO + 2)
    a("v_add_u32 v%d, 0x%x, v50", vO + 3, 3072 + D2)
    a("v_add_u32 v%d, 0x%x, v50", vO + 4, 4096 + D2)
    a("s_mul_i32 s49, s3, 5120")

def p1_loader(a):
    a("v_lshrrev_b32 v50, 3, v2")
    a("s_lshl_b32 s6, s3, 3")
    a("v_add_u32 v50, s6, v50")
    a("v_lshrrev_b32 v51, 1, v50")
    a("v_xor_b32 v51, v51, v2")
    a("v_and_b32 v51, 7, v51")
    a("v_lshlrev_b32 v51, 4, v51")
    a("s_mul_i32 s6, s45, 1280")
    a("v_add_u32 v51, s6, v51")
    a("s_sub_u32 s6, s46, 8")
    a("v_add_u32 v50, s6, v50")
    a("s_movk_i32 s49, 2560")
    a("v_mov_b32 v53, 0x%x", OOB)
    for n in range(3):
        a("v_add_u32 v52, %d, v50", 32 * n)
        a("v_mad_u32_u24 v%d, v52, s49, v51", vX + n)
        a("v_cmp_gt_u32 vcc, 1024, v52")
        a("v_cndmask_b32 v%d, v53, v%d, vcc", vX + n, vX + n)
    a("s_lshl_b32 s54, s3, 10")
    a("s_add_u32 s54, s54, %d", L_X)
    a("s_cmp_eq_u32 s3, 0")
    a("s_cselect_b32 s56, 0xffffff00, -1")
    a("s_mov_b32 s57, -1")
    a("s_and_b32 s50, s3, 1")
    a("s_lshr_b32 s51, s3, 1")
    a("s_lshl_b32 s53, s51, 2")
    a("s_add_u32 s53, s53, s50")
    a("s_add_u32 s51, s53, s50")
    a("v_lshrrev_b32 v50, 5, v2")
    a("v_add_u32 v51, s51, v50")
    a("v_lshlrev_b32 v51, 1, v51")
    a("v_sub_u32 v51, v2, v51")
    a("v_and_b32 v51, 31, v51")
    a("v_mul_u32_u24 v52, 47, v51")
    a("v_lshrrev_b32 v52, 9, v52")
    a("v_mul_u32_u24 v54, 11, v52")
    a("v_sub_u32 v54, v51, v54")
    a("v_mul_u32_u24 v52, 1280, v52")
    a("v_lshl_add_u32 v52, v54, 4, v52")
    a("s_lshl_b32 s51, s53, 1")
    a("v_add_u32 v50, s51, v50")
    a("v_mul_u32_u24 v50, 3840, v50")
    a("s_mul_i32 s51, s44, 160")
    a("v_add3_u32 v%d, v50, v52, s51", vW)
    a("v_cmp_gt_u32 vcc, 10, v54")
    a("v_cndmask_b32 v%d, v53, v%d, vcc", vW, vW)
    a("s_lshl_b32 s55, s53, 10")
    def issue_x(par):
        for n in range(3):
            a("s_add_u32 m0, s54, %d", par * 12288 + n * 4096)
            if n == 0: a("s_mov_b64 exec, s[56:57]")
            if not OPT["nodma"]: a("buffer_load_dwordx4 v%d, %s, s52 offen lds", vX + n, sr(S_X))
            if n == 0: a("s_mov_b64 exec, -1")
        a("s_add_u32 s52, s52, 128")
    def issue_w(slab):
        for di in (0, 2, 8, 10):
            a("s_add_u32 m0, s55, %d", L_W + slab * 16384 + di * 1024)
            a("s_add_u32 s51, s53, %d", 2 * di * 3840)
            if not OPT["nodma"]: a("buffer_load_dwordx4 v%d, %s, s51 offen lds", vW, sr(S_WQKV))
        a("s_add_u32 s53, s53, %d", 32 * 3840)
    a("s_mov_b32 s52, 0")
    a("s_mov_b32 s53, 0")
    a("s_waitcnt lgkmcnt(0)")
    srd(a, S_X, P_X, 2048 * 1280)
    issue_x(0)
    srd(a, S_WQKV, P_WQKV, 640 * 3840)
    issue_w(0)
    issue_w(1)
    epoch_load(a)
    p2_scalars(a)
    l_setup(a)
    tag_ready(a)
    stamp(a, 1, True)
    a("s_waitcnt vmcnt(4)")
    if OPT["diag"]: gen.stamp(a, 1)
    a("s_barrier")
    issue_w(2)
    issue_x(1)
    issue_w(3)
    def step(i):
        q = i % 4
        a("s_waitcnt vmcnt(%d)", 8 if q % 2 == 0 else 11)
        if OPT["diag"] and i in (3, 7, 11, 15): gen.stamp(a, {3: 2, 7: 3, 11: 4, 15: 5}[i])
        a("s_barrier")
    def issue(i):
        q = i % 4
        if q % 2 == 0: issue_x((q // 2 + 1) % 2)
        issue_w((q + 3) % 4)
    if OPT["diag"]:
        for i in range(1, 17):
            step(i); issue(i)
    else:
        a("s_mov_b32 s50, 0")
        a.label("P1L_loop")
        for i in (1, 2, 3, 4):
            step(i); issue(i)
        a("s_add_u32 s50, s50, 1")
        a("s_cmp_lt_u32 s50, 4")
        a("s_cbranch_scc1 P1L_loop")
    step(17)
    stamp(a, 2, True)
    x_issue(a, (0, 1)); stat_issue(a, (0, 1))
    a("s_waitcnt vmcnt(8)")
    a("s_barrier")
    a("s_waitcnt vmcnt(4)")
    stamp(a, 3, True)
    a("s_barrier")
    a("s_barrier")
    wo_issue(a, range(0, OPT["wo1"]))
    a("s_barrier")

def helper_loader(a):
    a("s_waitcnt lgkmcnt(0)")
    srd(a, S_X, P_X, 2048 * 1280)
    srd(a, S_WQKV, P_WQKV, 640 * 3840)
    a("s_sub_u32 s55, s5, 24")
    a("s_lshl_b32 s55, s55, 2")
    a("s_add_u32 s55, s55, s3")
    pf_setup(a, 55, "h")
    a("s_mov_b32 s56, %d", OPT["S0"])
    a.label("HL_loop")
    if OPT["thr"]: a("s_waitcnt vmcnt(%d)", OPT["thr"] - 1)
    pf_issue(a, 56, "h")
    a("s_add_u32 s56, s56, 1")
    a("s_cmp_lt_u32 s56, 10")
    a("s_cbranch_scc1 HL_loop")
    srd(a, S_WO, P_WO, 640 * 1280)
    a("v_lshlrev_b32 v8, 7, v2")
    a("s_mul_i32 s48, s55, %d", 5 * 8192)
    for i in range(5):
        if OPT["thr"]: a("s_waitcnt vmcnt(%d)", OPT["thr"] - 1)
        a("buffer_load_dword v%d, v8, %s, s48 offen", DUMP, sr(S_WO))
        if i < 4: a("s_add_u32 s48, s48, 8192")
    stamp(a, 1)
    p2_scalars(a)
    a("s_cmp_eq_u32 s63, 0")
    a("s_cbranch_scc1 K_end")
    l_setup(a)
    wo_issue(a, range(0, OPT["wo1"]))
    a("s_barrier")
    a("v_mov_b32 v50, %d", L_TG)
    a("ds_read_b32 v50, v50")
    a("s_waitcnt lgkmcnt(0)")
    a("v_readfirstlane_b32 s%d, v50", TAG)
    x_issue(a, (0, 1)); stat_issue(a, (0, 1))

ACC = 16; WF = 112; XF = 144; VA = 192
BB, BP, B0, ONES, MB = 200, 204, 208, 212, 216
aVW, aV0, aV1, aOS, aOL, aO1 = 218, 219, 220, 221, 222, 223
aVW2 = 198
aS0 = 224; STT = 232; T2 = 244
pT, pOUT, pW0, pW1, pO = 1, 7, 10, 11, 4
def acc(m, T): return ACC + (m * 4 + T) * 4

def p2_waddr(a, t, full=True):
  if full:
    a("v_and_b32 v%d, 1, v3", t)
    a("v_lshl_add_u32 v%d, v%d, 2, v4", t, t)
    a("v_lshl_add_u32 v%d, v%d, 2, v5", t, t)
    a("s_lshl_b32 s51, s%d, 3", sNP)
    a("v_add_u32 v%d, s51, v%d", pW0, t)
    a("v_add_u32 v%d, 4, v%d", pW1, pW0)
    a("v_and_b32 v%d, 31, v%d", pW0, pW0)
    a("v_and_b32 v%d, 31, v%d", pW1, pW1)
    a("v_lshl_add_u32 v%d, v3, 3, v4", t)
    a("v_lshlrev_b32 v%d, 8, v%d", t, t)
    a("v_lshl_add_u32 v%d, v%d, 3, v%d", pW0, pW0, t)
    a("v_lshl_add_u32 v%d, v%d, 3, v%d", pW1, pW1, t)
  if True:
    a("v_add_u32 v%d, s%d, v6", pT, sT0)
    a("v_and_b32 v%d, 1, v3", t)
    a("v_lshlrev_b32 v%d, 5, v%d", t, t)
    a("v_lshrrev_b32 v%d, 1, v3", t + 1)
    a("v_lshl_add_u32 v%d, v%d, 4, v%d", t, t + 1, t)
    a("v_add_u32 v%d, s%d, v%d", t, sCOL, t)
    a("v_mov_b32 v%d, 0x%x", t + 3, OOB)
    a("s_movk_i32 s51, 1280")
    for m in range(3):
        a("v_add_u32 v%d, %d, v%d", t + 1, 16 * m, pT)
        a("v_cmp_gt_u32 vcc, 2048, v%d", t + 1)
        a("v_lshrrev_b32 v%d, 10, v%d", t + 2, t + 1)
        a("v_and_b32 v%d, 1023, v%d", t + 1, t + 1)
        a("v_lshl_add_u32 v%d, v%d, 1, v%d", t + 1, t + 1, t + 2)
        a("v_mad_u32_u24 v%d, v%d, s51, v%d", t + 1, t + 1, t)
        a("v_cndmask_b32 v%d, v%d, v%d, vcc", pOUT + m, t + 3, t + 1)
  if full:
    a("v_lshrrev_b32 v%d, 1, v3", t)
    a("v_mul_u32_u24 v%d, 2560, v%d", t, t)
    a("v_mul_u32_u24 v%d, 160, v6", t + 1)
    a("v_add_u32 v%d, v%d, v%d", t, t, t + 1)
    a("v_and_b32 v%d, 1, v3", t + 1)
    a("v_lshl_add_u32 v%d, v%d, 4, v%d", pO, t + 1, t)

def p1_setup(a):
    t = 16
    a("s_sub_u32 s49, s3, 4")
    for i in range(4): a("v_mov_b32 v%d, 0x3f803f80", ONES + i)
    a("s_cmp_ge_u32 s49, 2")
    a("s_cbranch_scc1 P1C_noones")
    a("s_mul_i32 s48, s49, 12288")
    a("s_add_u32 s48, s48, %d", L_X)
    a("v_lshl_add_u32 v16, v2, 4, s48")
    a("s_mov_b64 exec, 0xff")
    a("ds_write_b128 v16, %s", vr(ONES, 4))
    a("s_mov_b64 exec, -1")
    a.label("P1C_noones")
    a("v_and_b32 v20, 1, v3")
    a("v_lshl_add_u32 v20, v20, 2, v4")
    a("v_lshlrev_b32 v20, 2, v20")
    a("v_lshl_add_u32 v21, v3, 3, v4")
    a("v_lshlrev_b32 v21, 9, v21")
    a("s_mul_i32 s48, s49, 5")
    a("v_add_u32 v20, s48, v20")
    a("v_mov_b32 v22, v5")
    a("v_add_u32 v23, 22, v5")
    a("v_add_u32 v24, 44, v5")
    a("v_cmp_eq_u32 vcc, 0, v5")
    a("v_cndmask_b32 v24, v24, 4, vcc")
    a("v_lshlrev_b32 v25, 2, v5")
    a("v_add_u32 v25, 40, v25")
    a("v_cndmask_b32 v25, v25, 26, vcc")
    a("s_and_b32 s57, s49, 1")
    a("s_sub_u32 s57, 21, s57")
    a("s_sub_u32 s57, s57, s48")
    a("v_mov_b32 v26, s57")
    a("v_cmp_eq_u32 vcc, 3, v5")
    a("v_cndmask_b32 v25, v25, v26, vcc")
    for T in range(4):
        a("v_add_u32 v26, v%d, v20", 22 + T)
        a("v_and_b32 v26, 63, v26")
        a("v_lshl_add_u32 v%d, v26, 3, v21", VA + T)
    a("v_lshrrev_b32 v20, 1, v6")
    a("v_xor_b32 v20, v20, v3")
    a("v_lshlrev_b32 v20, 4, v20")
    a("v_lshl_add_u32 v20, v6, 7, v20")
    a("v_add_u32 v%d, %d, v20", VA + 4, L_X)
    a("v_xor_b32 v%d, 64, v%d", VA + 5, VA + 4)
    a("s_waitcnt lgkmcnt(0)")
    epoch_load(a)
    srd(a, S_X, P_X, 2048 * 1280)
    srd(a, S_WQKV, P_WQKV, 640 * 3840)
    srd(a, S_WS, P_WS, WS_BYTES)
    srd(a, S_OUT, P_OUT, 2048 * 1280)
    t = 20
    a("v_lshlrev_b32 v%d, 2, v3", t)
    a("v_sub_u32 v%d, v6, v%d", t, t)
    a("v_mov_b32 v%d, 0x%x", t + 1, NEG)
    a("s_cmp_eq_u32 s46, 0")
    a("s_cselect_b32 s54, 0, -1")
    a("v_mov_b32 v%d, 0xffff", t + 2)
    a("v_mov_b32 v%d, s7", t + 3)
    for r in range(4):
        a("v_subrev_u32 v%d, %d, v%d", t + 4, r, t)
        a("v_cmp_gt_u32 vcc, 8, v%d", t + 4)
        a("v_cndmask_b32 v%d, v%d, 0, vcc", BB + r, t + 1)
        if r % 2 == 0: a("v_cndmask_b32 v%d, 0, v%d, vcc", MB + r // 2, t + 2)
        else:
            a("v_cndmask_b32 v%d, 0, v%d, vcc", t + 5, t + 3)
            a("v_or_b32 v%d, v%d, v%d", MB + r // 2, MB + r // 2, t + 5)
        a("s_and_b32 vcc_lo, vcc_lo, s54")
        a("v_cndmask_b32 v%d, v%d, 0, vcc", B0 + r, t + 1)
        a("v_cmp_gt_i32 vcc, -8, v%d", t + 4)
        a("v_cndmask_b32 v%d, v%d, 0, vcc", BP + r, t + 1)
    a("s_sub_u32 s57, s3, 4")
    if OPT["S0"] > 1:
        a("s_cmp_ge_u32 s5, 20")
        a("s_cbranch_scc1 P1_nopf")
        a("s_cmp_ge_u32 s57, %d", OPT["S0"] - 1)
        a("s_cbranch_scc1 P1_nopf")
        pf_setup(a, 5, "g")
        a("s_add_u32 s55, s57, 1")
        pf_issue(a, 55, "g")
        a.label("P1_nopf")
    a("s_mul_i32 s55, s57, 4608")
    a("s_add_u32 s55, s55, %d", L_VT)
    a("v_mul_u32_u24 v%d, 48, v6", t)
    a("v_lshl_add_u32 v%d, v3, 4, v%d", t, t)
    a("s_sub_u32 s51, s55, 16")
    a("v_add_u32 v%d, s51, v%d", aVW, t)
    a("v_add_u32 v%d, 2304, v%d", aVW2, aVW)
    a("v_lshl_add_u32 v%d, v3, 2, v4", t)
    a("v_mul_u32_u24 v%d, 48, v%d", t, t)
    a("v_add_u32 v%d, s55, v%d", t, t)
    a("v_lshlrev_b32 v%d, 2, v5", t + 1)
    a("v_mov_b32 v%d, 0x4201", t + 2)
    a("v_bfe_u32 v%d, v%d, v%d, 4", t + 2, t + 2, t + 1)
    a("v_lshl_add_u32 v%d, v%d, 3, v%d", aV0, t + 2, t)
    a("v_mov_b32 v%d, 0x5553", t + 2)
    a("v_bfe_u32 v%d, v%d, v%d, 4", t + 2, t + 2, t + 1)
    a("v_lshl_add_u32 v%d, v%d, 3, v%d", aV1, t + 2, t)
    a("s_mul_i32 s51, s57, 40")
    a("s_add_u32 s51, s51, %d", L_OST)
    a("v_mul_u32_u24 v%d, 160, v6", t)
    a("v_lshl_add_u32 v%d, v3, 3, v%d", t, t)
    a("v_add_u32 v%d, s51, v%d", aOS, t)
    a("s_sub_u32 s51, s46, 8")
    a("v_add_u32 v%d, s51, v6", t)
    a("s_lshl_b32 s51, s45, 10")
    a("s_movk_i32 s52, 1023")
    for m in range(6):
        a("v_add_u32 v%d, %d, v%d", t + 1, 16 * m, t)
        a("v_med3_i32 v%d, v%d, 0, s52", t + 1, t + 1)
        a("v_add_lshl_u32 v%d, v%d, s51, 3", aS0 + m, t + 1)
    a("v_subrev_u32 v%d, 256, v0", aO1)
    a("v_lshlrev_b32 v%d, 4, v%d", aO1, aO1)
    a("v_add_u32 v%d, %d, v%d", aOL, L_OST + 1280, aO1)
    a("s_lshl_b32 s56, s45, 10")
    a("s_add_u32 s56, s56, s46")
    a("s_mul_i32 s56, s56, 160")
    a("s_mul_i32 s51, s44, %d", 2048 * 160)
    a("s_add_u32 s56, s56, s51")
    a("s_add_u32 s56, s56, 0x%x", O_OFF)
    a("s_add_u32 s%d, s%d, s56", S_O, P_WS)
    a("s_addc_u32 s%d, s%d, 0", S_O + 1, P_WS + 1)
    a("s_and_b32 s%d, s%d, 0xffff", S_O + 1, S_O + 1)
    a("s_sub_u32 s51, 1024, s46")
    a("s_min_u32 s51, s51, 88")
    a("s_mul_i32 s%d, s51, 160", S_O + 2)
    a("s_mov_b32 s%d, 0x20000", S_O + 3)
    a("s_lshl_b32 s51, s47, 3")
    a("s_add_u32 s44, s44, s51")
    a("s_lshl_b32 s44, s44, 7")
    a("s_add_u32 s44, s44, 0x%x", FLAG_OFF)
    p2_scalars(a)
    p2_waddr(a, t)
    a("s_mov_b32 s58, 0x%x", CEXP)
    tag_ready(a)

def interleave(a, M, V, start, per):
    V = list(V)
    for k, m in enumerate(M):
        a(m)
        if k >= start:
            for x in V[:per]: a(x)
            V = V[per:]
    return V
def lines(f):
    s = Asm(); f(s)
    return [l.strip() for l in s.lines if l.strip()]

def p1_compute(a):
    stamp(a, 1)
    def rd_list(i):
        q, b = i % 4, i % 2
        L = []
        for T in range(4):
            for h in range(2):
                L.append("ds_read_b64_tr_b16 %s, v%d offset:%d" % (vr(WF + b * 16 + T * 4 + h * 2, 2), VA + T, L_W + q * 16384 + h * 2048))
        for m in range(6):
            L.append("ds_read_b128 %s, v%d offset:%d" % (vr(XF + b * 24 + m * 4, 4), VA + 4 + b, (q // 2) * 12288 + m * 2048))
        return L
    def mf_list(i, first=False):
        b = i % 2
        if OPT["nomf"]: return ["s_nop 0"] * 24
        return ["v_mfma_f32_16x16x32_bf16 %s, %s, %s, %s" % (vr(acc(m, T), 4), vr(WF + b * 16 + T * 4, 4), vr(XF + b * 24 + m * 4, 4), "0" if first else vr(acc(m, T), 4))
                for m in range(6) for T in range(4)]
    def step(i, first=False, extra=()):
        a("s_barrier")
        interleave(a, mf_list(i - 1, first), list(extra) + rd_list(i), 0, 1)
        a("s_waitcnt lgkmcnt(0)")
    a("s_barrier")
    for r in rd_list(0): a(r)
    a("s_waitcnt lgkmcnt(0)")
    step(1, True)
    a("s_mov_b32 s48, 0")
    a("s_branch P1C_in")
    a.label("P1C_loop")
    step(1)
    a.label("P1C_in")
    step(2); step(3)
    a("s_add_u32 s48, s48, 1")
    a("s_cmp_lt_u32 s48, 4")
    step(4)
    a("s_cbranch_scc1 P1C_loop")
    ld = ["buffer_load_dwordx2 %s, v%d, %s, 0 offen sc1" % (vr(STT + 2 * m, 2), aS0 + m, sr(S_WS)) for m in range(6)]
    step(17, extra=ld); step(18); step(19)
    a("s_barrier")
    a("s_setprio 3")
    stamp(a, 2)
    a("s_waitcnt vmcnt(0)")
    poll_begin(a, "P1C_poll")
    M = mf_list(19)
    CS, QF, KF = WF, XF, XF + 24
    for m in range(6): a("v_xor_b32 v%d, s%d, v%d", CS + m, TAG, STT + 2 * m + 1)
    a("v_or3_b32 v%d, v%d, v%d, v%d", CS, CS, CS + 1, CS + 2)
    a("v_or3_b32 v%d, v%d, v%d, v%d", CS + 3, CS + 3, CS + 4, CS + 5)
    a("v_or_b32 v%d, v%d, v%d", CS, CS, CS + 3)
    a("v_cmp_ne_u32 vcc, 0, v%d", CS)
    a("s_cbranch_vccnz P1C_slow")
    a.label("P1C_statok")
    a("s_mov_b64 vcc, 0xffff")
    def statf(s):
        for m in range(6):
            st = STT + 2 * m
            s("v_and_b32 v%d, s7, v%d", st + 1, st)
            s("v_rcp_f32 v%d, v%d", st + 1, st + 1)
            s("v_lshlrev_b32 v%d, 16, v%d", st, st)
    def csf(s):
        for i in range(16):
            s("v_mov_b32_dpp v%d, v%d row_newbcast:0 row_mask:0xf bank_mask:0xf", CS + i, acc(0, 0) + i)
    def scale(s, m):
        st = STT + 2 * m
        for T in range(4):
            for h in range(2):
                r = acc(m, T) + 2 * h
                s("v_pk_fma_f32 %s, %s, %s, %s op_sel_hi:[0,1,1] neg_lo:[1,0,0] neg_hi:[1,0,0]", vr(r, 2), vr(st, 2), vr(CS + T * 4 + 2 * h, 2), vr(r, 2))
        for T in range(4):
            for h in range(2):
                r = acc(m, T) + 2 * h
                s("v_pk_mul_f32 %s, %s, %s op_sel:[0,1]", vr(r, 2), vr(r, 2), vr(st, 2))
        dst = {0: QF + 4 * m, 1: KF + 4 * m, 2: T2 + 2 * m, 3: KF + 4 * m + 2}
        for T in (2, 3, 1, 0):
            for h in range(2):
                s("v_cvt_pk_bf16_f32 v%d, v%d, v%d", dst[T] + h, acc(m, T) + 2 * h, acc(m, T) + 2 * h + 1)
        for h in range(2):
            s("v_cndmask_b32 v%d, 0, v%d, vcc", QF + 4 * m + 2 + h, T2 + 2 * m + h)
    def pk(m): return lines(lambda s: scale(s, m))[:16]
    def cv(m): return lines(lambda s: scale(s, m))[16:]
    V = lines(statf) + lines(csf)
    V = interleave(a, M, V, 0, 2)
    for x in V: a(x)
    stamp(a, 3)
    SB = lambda m: acc(m, 0)
    SP = lambda m: acc(m, 1)
    MX = lambda m: acc(m, 2)
    def vwrite(ms):
        a("s_not_b64 exec, vcc")
        for m in ms:
            if m < 3: a("ds_write2_b64 v%d, %s, %s offset0:%d offset1:%d", aVW, vr(T2 + 2 * m, 2), vr(KF + 4 * m + 2, 2), m * 96, m * 96 + 1)
            else: a("ds_write2_b64 v%d, %s, %s offset0:%d offset1:%d", aVW2, vr(T2 + 2 * m, 2), vr(KF + 4 * m + 2, 2), (m - 3) * 96, (m - 3) * 96 + 1)
        a("s_mov_b64 exec, -1")
    def smf(m):
        return ["v_mfma_f32_16x16x32_bf16 %s, %s, %s, %s" % (vr(SB(m), 4), vr(KF + 4 * m, 4), vr(QF + 4 * m, 4), vr(B0 if m == 0 else BB, 4)),
                "v_mfma_f32_16x16x32_bf16 %s, %s, %s, %s" % (vr(SP(m), 4), vr(KF + 4 * max(m - 1, 0), 4), vr(QF + 4 * m, 4), vr(BP, 4))]
    def merge(m):
        for r in range(4): a("v_max_f32 v%d, v%d, v%d", SB(m) + r, SB(m) + r, SP(m) + r)
        a("v_max3_f32 v%d, v%d, v%d, v%d", MX(m), SB(m), SB(m) + 1, SB(m) + 2)
        a("v_max_f32 v%d, v%d, v%d", MX(m), MX(m), SB(m) + 3)
    for m in range(6):
        for x in pk(m): a(x)
        C = cv(m)
        F = smf(m - 1) if m else []
        for k, x in enumerate(C):
            if F and k == 0: a(F[0])
            if F and k == 3: a(F[1])
            a(x)
        if m >= 2: merge(m - 2)
    vwrite((0, 1, 2, 3, 4, 5))
    for x in smf(5): a(x)
    merge(4)
    VT0, VT1 = WF, WF + 14
    for k in range(7):
        mm = max(k - 1, 0)
        a("ds_read_b64_tr_b16 %s, v%d offset:%d", vr(VT0 + 2 * k, 2), aV0, mm * 768)
        a("ds_read_b64_tr_b16 %s, v%d offset:%d", vr(VT1 + 2 * k, 2), aV1, mm * 768)
    S32, S16 = "v_permlane32_swap_b32", "v_permlane16_swap_b32"
    a("%s v%d, v%d", S32, MX(0), MX(1))
    a("%s v%d, v%d", S32, MX(2), MX(3))
    merge(5)
    a("v_max_f32 v%d, v%d, v%d", MX(0), MX(0), MX(1))
    a("v_max_f32 v%d, v%d, v%d", MX(2), MX(2), MX(3))
    a("%s v%d, v%d", S32, MX(4), MX(5))
    a("%s v%d, v%d", S16, MX(0), MX(2))
    a("v_max_f32 v%d, v%d, v%d", MX(5), MX(4), MX(5))
    a("v_mov_b32 v%d, v%d", MX(4), MX(5))
    a("v_max_f32 v%d, v%d, v%d", MX(0), MX(0), MX(2))
    a("v_mul_f32 v%d, s58, v%d", MX(0), MX(0))
    a("%s v%d, v%d", S16, MX(4), MX(5))
    a("v_mov_b32 v%d, v%d", MX(2), MX(0))
    a("v_max_f32 v%d, v%d, v%d", MX(4), MX(4), MX(5))
    a("v_mul_f32 v%d, s58, v%d", MX(4), MX(4))
    a("%s v%d, v%d", S16, MX(0), MX(2))
    a("v_mov_b32 v%d, v%d", MX(5), MX(4))
    a("v_mov_b32 v%d, v%d", MX(1), MX(0))
    a("v_mov_b32 v%d, v%d", MX(3), MX(2))
    a("%s v%d, v%d", S32, MX(4), MX(5))
    a("%s v%d, v%d", S32, MX(0), MX(1))
    a("%s v%d, v%d", S32, MX(2), MX(3))
    stamp(a, 4)
    O0 = lambda m: acc(m, 0)
    O1 = lambda m: acc(m, 3)
    OS = lambda m: acc(m, 2)
    def post(m):
        L = ["v_rcp_f32 v%d, v%d" % (OS(m), OS(m))]
        for b in (O0(m), O0(m) + 2, O1(m), O1(m) + 2):
            L.append("v_pk_mul_f32 %s, %s, %s op_sel_hi:[1,0]" % (vr(b, 2), vr(b, 2), vr(OS(m), 2)))
        for b in (O0(m), O1(m)):
            L.append("v_cvt_pk_bf16_f32 v%d, v%d, v%d" % (b, b, b + 1))
            L.append("v_cvt_pk_bf16_f32 v%d, v%d, v%d" % (b + 1, b + 2, b + 3))
        L.append("ds_write_b64 v%d, %s offset:%d" % (aOS, vr(O0(m), 2), m * 2560))
        return L
    def pv(m):
        return ["v_mfma_f32_16x16x32_bf16 %s, %s, %s, 0" % (vr(OS(m), 4), vr(ONES, 4), vr(SP(m), 4)),
                "v_mfma_f32_16x16x32_bf16 %s, %s, %s, 0" % (vr(O0(m), 4), vr(VT0 + 2 * m, 4), vr(SP(m), 4)),
                "v_mfma_f32_16x16x32_bf16 %s, %s, %s, 0" % (vr(O1(m), 4), vr(VT1 + 2 * m, 4), vr(SP(m), 4))]
    order = (4, 5, 0, 1, 2, 3)
    for m in order:
        for h in range(2):
            a("v_pk_fma_f32 %s, %s, s[58:59], %s op_sel_hi:[1,0,0] neg_lo:[0,0,1] neg_hi:[0,0,1]", vr(SB(m) + 2 * h, 2), vr(SB(m) + 2 * h, 2), vr(MX(m), 2))
    a("s_waitcnt lgkmcnt(0)")
    prev = None
    for n, m in enumerate(order):
        F = pv(prev) if prev is not None else []
        for r in range(4):
            if r < 3 and F: a(F[r])
            a("v_exp_f32 v%d, v%d", SB(m) + r, SB(m) + r)
        for h in range(2):
            a("v_cvt_pk_bf16_f32 v%d, v%d, v%d", SP(m) + h, SB(m) + 2 * h, SB(m) + 2 * h + 1)
        for h in range(2):
            a("v_and_b32 v%d, v%d, v%d", SP(m) + 2 + h, SP(m) + h, MB + h)
        for h in range(2):
            a("v_xor_b32 v%d, v%d, v%d", SP(m) + h, SP(m) + h, SP(m) + 2 + h)
        prev = m
    for x in pv(prev): a(x)
    for m in order:
        for x in post(m): a(x)
    a("s_mov_b64 exec, vcc")
    for m in order:
        a("ds_write_b64 v%d, %s offset:%d", aOS, vr(O1(m), 2), m * 2560 + 32)
    a("s_mov_b64 exec, -1")
    a("s_waitcnt lgkmcnt(0)")
    a("s_barrier")
    stamp(a, 5)
    for n in range(4):
        a("ds_read_b128 %s, v%d offset:%d", vr(16 + 4 * n, 4), aOL, n * 4096)
    for n in range(4):
        a("s_movk_i32 s51, %d", n * 4096)
        a("s_waitcnt lgkmcnt(%d)", 3 - n)
        a("buffer_store_dwordx4 %s, v%d, %s, s51 offen sc1", vr(16 + 4 * n, 4), aO1, sr(S_O))

def p1_slow(a):
    a.label("P1C_slow")
    for m in range(6):
        a("buffer_load_dwordx2 %s, v%d, %s, 0 offen sc1", vr(STT + 2 * m, 2), aS0 + m, sr(S_WS))
    a("s_waitcnt vmcnt(0)")
    a("s_sub_u32 s59, s59, 1")
    a("s_cmp_lg_u32 s59, 0")
    a("s_cbranch_scc1 P1C_poll")
    a("s_branch P1C_statok")

WR = 64; AC2 = 16; OF = 40
L2_X = 65536
XR = lambda m: 224 + 8 * m
XN = lambda m: 228 + 8 * m
RS, RT, UP, RN = 32, 38, 64, 16
def x_issue(a, ms):
    for m in ms:
        a("buffer_load_dwordx4 %s, v%d, %s, 0 offen", vr(XR(m), 4), pOUT + m, sr(S_X))
def stat_issue(a, ms):
    for m in ms:
        a("v_add_u32 v24, %d, v%d", 16 * m, pT)
        a("v_min_u32 v24, 2047, v24")
        a("v_lshlrev_b32 v24, 3, v24")
        a("buffer_load_dwordx2 %s, v24, %s, 0 offen sc1", vr(RS + 2 * m, 2), sr(S_WS))
def upd_issue(a, up):
    a("s_mov_b32 s6, 0x%x", TOP_OFF)
    a("buffer_load_dwordx2 %s, off, %s, s6 sc1", vr(RT, 2), sr(S_WS))
    a("v_and_b32 v25, 1, v3")
    a("v_lshlrev_b32 v25, 6, v25")
    a("v_lshrrev_b32 v26, 1, v3")
    a("v_lshl_add_u32 v25, v26, 5, v25")
    a("s_lshl_b32 s6, s%d, 1", sCOL)
    a("s_add_u32 s6, s6, 0x%x", UPD_OFF)
    for k in range(2):
        for h in range(2):
            a("buffer_load_dwordx4 %s, v25, %s, s6 offen offset:%d sc1", vr(up + 8 * k + 4 * h, 4), sr(S_WS), k * 2560 + h * 16)
def xn_compute(a, ms, uid):
    poll_begin(a, "XN_p%s" % uid)
    a("v_mov_b32 v16, 0")
    for m in ms:
        a("v_xor_b32 v17, s%d, v%d", TAG, RS + 2 * m + 1)
        a("v_or_b32 v16, v16, v17")
    a("v_cmp_ne_u32 vcc, 0, v16")
    a("s_cbranch_vccz XN_ok%s", uid)
    a("s_sleep 2")
    stat_issue(a, ms)
    a("s_waitcnt vmcnt(0)")
    a("s_sub_u32 s59, s59, 1")
    a("s_cmp_lg_u32 s59, 0")
    a("s_cbranch_scc1 XN_p%s", uid)
    a.label("XN_ok%s" % uid)
    for m in ms:
        st = RS + 2 * m
        a("v_and_b32 v%d, s7, v%d", st + 1, st)
        a("v_rcp_f32 v%d, v%d", st + 1, st + 1)
        a("v_lshlrev_b32 v%d, 16, v%d", st, st)
    for m in ms:
        st = RS + 2 * m
        unp(a, RN, XR(m))
        for q in range(4):
            a("v_pk_add_f32 %s, %s, %s op_sel_hi:[1,0] neg_lo:[0,1] neg_hi:[0,1]", vr(RN + 2 * q, 2), vr(RN + 2 * q, 2), vr(st, 2))
        for q in range(4): a("v_cvt_pk_bf16_f32 v%d, v%d, v%d", XN(m) + q, RN + 2 * q, RN + 2 * q + 1)
        unp(a, RN, XN(m))
        for q in range(4):
            a("v_pk_mul_f32 %s, %s, %s op_sel:[0,1]", vr(RN + 2 * q, 2), vr(RN + 2 * q, 2), vr(st, 2))
        for q in range(4): a("v_cvt_pk_bf16_f32 v%d, v%d, v%d", XN(m) + q, RN + 2 * q, RN + 2 * q + 1)
def unp(s, dst, src):
    for r in range(4):
        s("v_lshlrev_b32 v%d, 16, v%d", dst + 2 * r, src + r)
        s("v_and_b32 v%d, s7, v%d", dst + 2 * r + 1, src + r)
def upd_check(a, ms, uid):
    a("v_readfirstlane_b32 s56, v%d", RT)
    a("v_readfirstlane_b32 s57, v%d", RT + 1)
    a("s_and_b32 s50, s56, 0xffff")
    a("s_lshr_b32 s51, s56, 16")
    a("s_sub_u32 s50, s50, s%d", sT0)
    a("s_sub_u32 s51, s51, s%d", sT0)
    if ms[0]:
        a("s_sub_u32 s50, s50, %d", 16 * ms[0])
        a("s_sub_u32 s51, s51, %d", 16 * ms[0])
    a("s_min_u32 s50, s50, s51")
    a("s_cmp_lg_u32 s57, s%d", TAG)
    a("s_cselect_b32 s50, 0, s50")
    a("s_cmp_lt_u32 s50, %d", 16 * len(ms))
    a("s_cbranch_scc1 UP_go%s", uid)
    a.label("UP_done%s" % uid)
def upd_apply(a, ms, up, uid):
    a.label("UP_go%s" % uid)
    poll_begin(a, "UP_p%s" % uid)
    a("v_xor_b32 v16, s%d, v%d", TAG, RT + 1)
    for n in range(8):
        a("v_xor_b32 v17, s%d, v%d", TAG, up + 1 + 2 * n)
        a("v_or_b32 v16, v16, v17")
    a("v_cmp_ne_u32 vcc, 0, v16")
    a("s_cbranch_vccz UP_ok%s", uid)
    a("s_sleep 2")
    upd_issue(a, up)
    a("s_waitcnt vmcnt(0)")
    a("s_sub_u32 s59, s59, 1")
    a("s_cmp_lg_u32 s59, 0")
    a("s_cbranch_scc1 UP_p%s", uid)
    a.label("UP_ok%s" % uid)
    a("v_readfirstlane_b32 s56, v%d", RT)
    for m in ms:
        a("s_and_b32 s50, s56, 0xffff")
        a("s_lshr_b32 s51, s56, 16")
        a("s_sub_u32 s50, s50, %d", 16 * m)
        a("s_sub_u32 s51, s51, %d", 16 * m)
        a("v_cmp_eq_u32 vcc, s50, v%d", pT)
        a("v_cmp_eq_u32 s[52:53], s51, v%d", pT)
        a("s_or_b64 s[54:55], vcc, s[52:53]")
        a("s_cbranch_scc0 UP_n%s%d", uid, m)
        for r in range(4):
            a("v_cndmask_b32 v20, 0, v%d, s[52:53]", up + 8 + 2 * r)
            a("v_cndmask_b32 v20, v20, v%d, vcc", up + 2 * r)
            a("v_lshlrev_b32 v16, 16, v20")
            a("v_and_b32 v17, s7, v20")
            a("v_lshlrev_b32 v18, 16, v%d", XN(m) + r)
            a("v_and_b32 v19, s7, v%d", XN(m) + r)
            a("v_add_f32 v16, v16, v18")
            a("v_add_f32 v17, v17, v19")
            a("v_cvt_pk_bf16_f32 v%d, v16, v17", XN(m) + r)
        a.label("UP_n%s%d" % (uid, m))
    a("s_branch UP_done%s", uid)
PK = 12
def final(s, m, A, U):
    for r in range(4): s("v_cvt_pk_bf16_f32 v%d, v%d, v%d", PK + r, A + 2 * r, A + 2 * r + 1)
    s("v_permlane16_swap_b32 v%d, v%d", PK, PK + 2)
    s("v_permlane16_swap_b32 v%d, v%d", PK + 1, PK + 3)
    for k in range(2):
        unp(s, A, PK)
        for r in range(4): s("v_pk_add_f32 %s, %s, %s", vr(A + 2 * r, 2), vr(A + 2 * r, 2), vr(U[k] + 2 * r, 2))
        for r in range(4): s("v_cvt_pk_bf16_f32 v%d, v%d, v%d", PK + r, A + 2 * r, A + 2 * r + 1)
    s("buffer_store_dwordx4 %s, v%d, %s, 0 offen", vr(PK, 4), pOUT + m, sr(S_OUT))

UPC = 44
def p2_compute(a):
    B = 248
    a("v_add_u32 v%d, 0x10000, v%d", B, pW0)
    a("v_add_u32 v%d, 0x10000, v%d", B + 1, pW1)
    a("v_add_u32 v%d, 0x20000, v%d", B + 2, pW0)
    a("v_add_u32 v%d, 0x20000, v%d", B + 3, pW1)
    a("s_barrier")
    def rdl(u):
        L = []
        for e in range(2):
            for h in range(2):
                base = (pW0, pW1, B, B + 1, B + 2, B + 3)[e + 2 * (u // 8)]
                L.append("ds_read_b64_tr_b16 %s, v%d offset:%d" % (vr(WR + 8 * u + 4 * e + 2 * h, 2), base, (u % 8) * 8192 + h * 1024))
        return L
    def rd(u):
        for x in rdl(u): a(x)
    for u in range(8): rd(u)
    a("s_waitcnt vmcnt(0) lgkmcnt(0)")
    a("s_barrier")
    a("s_cmp_lg_u32 s3, 4")
    a("s_cbranch_scc1 P2C_noflag")
    a("s_cmp_ge_u32 s5, 24")
    a("s_cbranch_scc1 P2C_noflag")
    a("v_mov_b32 v12, s%d", TAG)
    a("s_mov_b64 exec, 1")
    a("buffer_store_dword v12, off, %s, s44 sc1", sr(S_WS))
    a("s_mov_b64 exec, -1")
    a.label("P2C_noflag")
    stamp(a, 6)
    x_issue(a, (2,)); stat_issue(a, (2,)); upd_issue(a, UPC)
    for u in range(8, OPT["wo1"]): rd(u)
    a("s_lshl_b32 s50, s%d, 12", sNP)
    a("s_add_u32 s50, s50, %d", L2_X)
    a("v_lshl_add_u32 v%d, v2, 4, s50", pW0)
    a("s_waitcnt vmcnt(0)")
    xn_compute(a, (2,), "c")
    upd_check(a, (2,), "c")
    unp(a, 224, XR(2)); unp(a, 232, XN(2))
    a("s_barrier")
    for u in range(max(8, OPT["wo1"]), 20): rd(u)
    a("s_waitcnt lgkmcnt(0)")
    def ord_(n):
        m, ks = n // 20, n % 20
        return "ds_read_b128 %s, v%d offset:%d" % (vr(OF + (n % 6) * 4, 4), pO, m * 20480 + (ks // 5) * 5120 + (ks % 5) * 32)
    a("s_barrier")
    q = []
    def ds(x, tag): a(x); q.append(tag)
    for n in range(5): ds(ord_(n), n)
    for n in range(60):
        m, ks = n // 20, n % 20
        A = AC2 + 8 * m
        if n == 15: a("s_barrier")
        if n + 5 < 60: ds(ord_(n + 5), n + 5)
        k = q.index(n)
        a("s_waitcnt lgkmcnt(%d)", len(q) - 1 - k)
        del q[:k + 1]
        for e in range(2):
            d = vr(A + 4 * e, 4)
            a("v_mfma_f32_16x16x32_bf16 %s, %s, %s, %s", d, vr(WR + 8 * ks + 4 * e, 4), vr(OF + (n % 6) * 4, 4), d if ks else "0")
            if m and ks == 2:
                ds("ds_write_b128 v%d, %s offset:%d" % (pW0, vr(A - 8 + 4 * e, 4), (m - 1) * 2048 + e * 1024), "x")
        if m and ks == 8: a("s_barrier")
    final(a, 2, AC2 + 16, (224, 232))

def p2_loader(a):
    a("s_waitcnt vmcnt(0)")
    a("s_barrier")
    xn_compute(a, (0, 1), "l")
    a("s_barrier")
    stamp(a, 4, True)
    wo_issue(a, range(OPT["wo1"], 20))
    upd_issue(a, UP)
    a("s_waitcnt vmcnt(5)")
    a("s_barrier")
    a("s_mov_b64 exec, 0xf")
    poll_begin(a, "P2L_poll")
    a("buffer_load_dword v50, v%d, %s, 0 offen sc1", vFL, sr(S_WS))
    a("s_waitcnt vmcnt(0)")
    a("v_cmp_ne_u32 vcc, s%d, v50", TAG)
    poll_end(a, "P2L_poll", "P2L_go", OPT["fsleep"])
    a("s_mov_b64 exec, -1")
    stamp(a, 5, True)
    for m in range(3):
        if m == 2:
            a("s_cmp_eq_u32 s61, 42")
            a("s_cselect_b32 s51, s51, %d", m * 2560)
        else: a("s_movk_i32 s51, %d", m * 2560)
        for i in range(5):
            a("s_add_u32 m0, s49, %d", m * 20480 + i * 1024)
            a("buffer_load_dwordx4 v%d, %s, s51 offen sc1 lds", vO + i, sr(S_WS))
    a("s_lshl_b32 s50, s%d, 12", sNP)
    a("s_add_u32 s50, s50, %d", L2_X)
    a("v_lshl_add_u32 v50, v2, 4, s50")
    a("s_waitcnt vmcnt(10)")
    a("s_barrier")
    upd_check(a, (0, 1), "l")
    for m in range(2):
        unp(a, 96 + 16 * m, XR(m)); unp(a, 104 + 16 * m, XN(m))
    a("s_waitcnt vmcnt(5)")
    a("s_barrier")
    stamp(a, 6, True)
    a("s_waitcnt vmcnt(0)")
    for m in range(2):
        a("s_barrier")
        a("ds_read_b128 v[16:19], v50 offset:%d", m * 2048)
        a("ds_read_b128 v[20:23], v50 offset:%d", m * 2048 + 1024)
        a("s_waitcnt lgkmcnt(0)")
        final(a, m, 16, (96 + 16 * m, 104 + 16 * m))
    a("s_branch K_flush")

F_TOP = 0; F_P1 = 1024; F_H = 8192; F_XN = 12288; F_P2 = 16384
def ffn_w13(a):
    BL = [32 + 32 * i for i in range(7)]
    a("s_waitcnt lgkmcnt(0)")
    a("v_cmp_gt_u32 vcc, 8, v6")
    a("v_mov_b32 v8, s%d", P_U); a("v_mov_b32 v9, s%d", P_U + 1)
    a("v_mov_b32 v10, s%d", P_G); a("v_mov_b32 v11, s%d", P_G + 1)
    a("v_cndmask_b32 v8, v8, v10, vcc")
    a("v_cndmask_b32 v9, v9, v11, vcc")
    a("s_mul_i32 s48, s3, 160")
    a("v_lshl_add_u32 v10, v3, 3, s48")
    a("v_mul_u32_u24 v10, 3072, v10")
    a("v_and_b32 v11, 7, v6")
    a("v_lshl_add_u32 v10, v11, 4, v10")
    a("s_lshl_b32 s48, s44, 7")
    a("v_add_u32 v10, s48, v10")
    a("v_add_co_u32 v8, vcc, v8, v10")
    a("v_addc_co_u32 v9, vcc, 0, v9, vcc")
    for u in range(5):
        for jp in range(4):
            for h in range(2):
                a("global_load_dwordx4 %s, v[8:9], off offset:%d", vr(BL[u + 1] + 4 * (2 * jp + h), 4), 3072 * h)
            if not (u == 4 and jp == 3):
                step = 6144 if jp < 3 else 6144 + 24 * 3072
                a("v_add_co_u32 v8, vcc, 0x%x, v8", step)
                a("v_addc_co_u32 v9, vcc, 0, v9, vcc")
    a("s_barrier")
    srd(a, S_X, P_X, 2048 * 1280)
    srd(a, S_WS, P_WS, WS_BYTES)
    a("s_mul_i32 s50, s3, 1024")
    a("s_add_u32 s50, s50, %d", F_XN)
    a("v_lshrrev_b32 v24, 5, v2")
    a("v_and_b32 v25, 31, v2")
    a("v_lshlrev_b32 v26, 9, v24")
    a("v_lshl_add_u32 v26, v25, 4, v26")
    a("v_add_u32 v26, s50, v26")
    a("v_and_b32 v27, 1, v2")
    a("v_lshlrev_b32 v27, 9, v27")
    a("v_lshl_add_u32 v27, v3, 4, v27")
    a("v_add_u32 v27, s50, v27")
    a("s_lshl_b32 s50, s3, 10")
    a("s_add_u32 s50, s50, %d", F_P1)
    a("v_lshlrev_b32 v28, 9, v6")
    a("v_lshl_add_u32 v28, v3, 4, v28")
    a("v_add_u32 v28, s50, v28")
    a("v_min_u32 v25, 19, v25")
    a("v_lshlrev_b32 v24, 4, v24")
    smov64(a, 52, 0x0003000300030003)
    for u in range(5):
        a("s_waitcnt vmcnt(%d)", 8 * (4 - u))
        perm_unit(a, BL[u + 1], BL[u], 46, 47)
    stamp(a, 1)
    a("s_barrier")
    stamp(a, 2)
    a("v_mov_b32 v8, %d", F_TOP)
    a("ds_read_b64 v[12:13], v8")
    a("s_mul_i32 s50, s3, 320")
    a("s_waitcnt lgkmcnt(0)")
    a("v_readfirstlane_b32 s%d, v13", TAG)
    a("v_bfe_u32 v9, v12, v24, 16")
    a("v_lshlrev_b32 v11, 3, v9")
    a("buffer_load_dwordx2 v[12:13], v11, %s, 0 offen sc1", sr(S_WS))
    a("v_and_b32 v10, 1023, v9")
    a("v_lshrrev_b32 v9, 10, v9")
    a("v_lshl_add_u32 v9, v10, 1, v9")
    a("v_mul_u32_u24 v9, 1280, v9")
    a("v_lshl_add_u32 v9, v25, 4, v9")
    X = BL[5]
    a("buffer_load_dwordx4 %s, v9, %s, s50 offen", vr(X, 4), sr(S_X))
    a("s_waitcnt vmcnt(0)")
    poll_begin(a, "FF_sp")
    a("v_cmp_ne_u32 vcc, s%d, v13", TAG)
    a("s_cbranch_vccz FF_sok")
    a("buffer_load_dwordx2 v[12:13], v11, %s, 0 offen sc1", sr(S_WS))
    a("s_waitcnt vmcnt(0)")
    a("s_sub_u32 s59, s59, 1")
    a("s_cmp_lg_u32 s59, 0")
    a("s_cbranch_scc1 FF_sp")
    a.label("FF_sok")
    a("v_and_b32 v13, s7, v12")
    a("v_rcp_f32 v13, v13")
    a("v_lshlrev_b32 v12, 16, v12")
    norm8(a, X, X, 16, 12, 13, 7)
    a("ds_write_b128 v26, %s", vr(X, 4))
    for u in range(5):
        a("ds_read_b128 %s, v27 offset:%d", vr(X + 4 + 4 * u, 4), 64 * u)
    for u in range(5):
        a("s_waitcnt lgkmcnt(%d)", 4 - u)
        for t in range(8):
            d = vr(BL[6] + 4 * t, 4)
            a("v_mfma_f32_16x16x32_bf16 %s, %s, %s, %s", d, vr(BL[u] + 4 * t, 4), vr(X + 4 + 4 * u, 4), d if u else "0")
    a("s_mov_b64 exec, s[52:53]")
    for t in range(8):
        a("ds_write_b128 v28, %s offset:%d", vr(BL[6] + 4 * t, 4), t * 64)
    a("s_mov_b64 exec, -1")
    a("s_waitcnt lgkmcnt(0)")
    stamp(a, 3)
    a("s_barrier")
    a("s_cmp_ge_u32 s3, 2")
    a("s_cbranch_scc1 FF_w13_b3")
    a("v_and_b32 v8, 7, v2")
    a("v_lshlrev_b32 v8, 4, v8")
    a("v_lshrrev_b32 v9, 3, v2")
    a("v_add_lshl_u32 v8, v8, v9, 2")
    a("s_lshl_b32 s50, s3, 9")
    a("s_add_u32 s50, s50, %d", F_P1)
    a("v_add_u32 v8, s50, v8")
    a("v_add_u32 v9, 32, v8")
    for i in range(2):
        a("ds_read2st64_b32 %s, v8 offset0:%d offset1:%d", vr(32 + 2 * i, 2), 8 * i, 8 * i + 4)
        a("ds_read2st64_b32 %s, v9 offset0:%d offset1:%d", vr(36 + 2 * i, 2), 8 * i, 8 * i + 4)
    a("s_lshl_b32 s50, s3, 7")
    a("s_add_u32 s50, s50, %d", F_H)
    a("v_lshl_add_u32 v7, v2, 1, s50")
    a("s_waitcnt lgkmcnt(0)")
    a("v_pk_add_f32 v[32:33], v[32:33], v[34:35]")
    a("v_pk_add_f32 v[36:37], v[36:37], v[38:39]")
    a("v_add_f32 v32, v32, v33")
    a("v_add_f32 v36, v36, v37")
    a("v_cvt_pk_bf16_f32 v33, v32, v36")
    a("v_lshlrev_b32 v32, 16, v33")
    a("v_and_b32 v36, s7, v33")
    a("v_mul_f32 v10, 0x%x, v32", f32(-1.4426950408889634))
    a("v_exp_f32 v10, v10")
    a("v_add_f32 v10, 1.0, v10")
    a("v_rcp_f32 v10, v10")
    a("v_mul_f32 v10, v10, v32")
    bf16r(a, 10, 7)
    a("v_mul_f32 v10, v10, v36")
    a("v_cvt_pk_bf16_f32 v10, v10, v10")
    a("ds_write_b16 v7, v10")
    a("s_waitcnt lgkmcnt(0)")
    a.label("FF_w13_b3")
    a("s_barrier")
    a("s_cmp_ge_u32 s3, 2")
    a("s_cbranch_scc1 FF_ep")
    a("s_cmp_ge_u32 s44, 20")
    a("s_cbranch_scc1 FF_end")
    a("s_lshl_b32 s50, s3, 2")
    a("s_add_u32 s50, s50, %d", F_TOP + 8)
    a("v_mov_b32 v8, s50")
    a("ds_read_b32 v15, v8")
    a("v_mul_u32_u24 v14, %d, v3", 6 * 10240)
    a("v_lshl_add_u32 v14, v6, 4, v14")
    a("s_waitcnt lgkmcnt(0)")
    a("v_and_b32 v15, s7, v15")
    a("v_ashrrev_i32 v13, 31, v15")
    a("v_not_b32 v13, v13")
    a("v_or_b32 v13, 0x80000000, v13")
    a("v_xor_b32 v15, v15, v13")
    a("v_and_b32 v15, s7, v15")
    a("v_mul_f32 v15, 0x%x, v15", f32(-1.4426950408889634))
    a("v_exp_f32 v15, v15")
    a("v_add_f32 v15, 1.0, v15")
    a("v_rcp_f32 v15, v15")
    bf16r(a, 15, 7)
    a("s_sleep %d", OPT["ysleep"])
    poll_begin(a, "FF_yp")
    a("s_lshl_b32 s51, s44, 8")
    a("s_mul_i32 s50, s3, 5120")
    a("s_add_u32 s51, s51, s50")
    a("s_add_u32 s51, s51, 0x%x", Y_OFF)
    for n in range(6):
        a("buffer_load_dwordx4 %s, v14, %s, s51 offen sc1", vr(16 + 4 * n, 4), sr(S_WS))
        if n < 5: a("s_add_u32 s51, s51, 10240")
    a("s_waitcnt vmcnt(0)")
    a("v_mov_b32 v10, 0")
    for n in range(12):
        a("v_xor_b32 v11, s%d, v%d", TAG, 17 + 2 * n)
        a("v_or_b32 v10, v10, v11")
    a("v_cmp_ne_u32 vcc, 0, v10")
    poll_end(a, "FF_yp", "FF_yok", 8)
    for n in range(1, 6):
        a("v_add_f32 v16, v16, v%d", 16 + 4 * n)
        a("v_add_f32 v18, v18, v%d", 18 + 4 * n)
    for swap in ("v_permlane32_swap_b32", "v_permlane16_swap_b32"):
        a("v_mov_b32 v20, v16"); a("v_mov_b32 v19, v18")
        a("%s v16, v20", swap); a("%s v18, v19", swap)
        a("v_add_f32 v16, v16, v20"); a("v_add_f32 v18, v18, v19")
    bf16r(a, 16, 7); bf16r(a, 18, 7)
    a("v_mul_f32 v16, v15, v16"); a("v_mul_f32 v18, v15, v18")
    a("v_cvt_pk_bf16_f32 v16, v16, v18")
    a("s_lshl_b32 s51, s44, 7")
    a("s_mul_i32 s50, s3, 2560")
    a("s_add_u32 s51, s51, s50")
    a("s_add_u32 s51, s51, 0x%x", UPD_OFF)
    a("v_lshlrev_b32 v8, 3, v2")
    a("s_mov_b64 exec, 0xffff")
    a("buffer_store_dwordx2 v[16:17], v8, %s, s51 offen sc1", sr(S_WS))
    a("s_mov_b64 exec, -1")
    a("s_branch FF_end")
    a.label("FF_ep")
    a("s_cmp_lg_u32 s3, 2")
    a("s_cbranch_scc1 FF_end")
    a("s_cmp_lg_u32 s44, 23")
    a("s_cbranch_scc1 FF_end")
    a("v_lshlrev_b32 v8, 7, v2")
    poll_begin(a, "FF_ek")
    a("s_sleep 32")
    a("s_mov_b32 s50, 0x%x", FLAG_OFF)
    for n in range(3):
        a("buffer_load_dword v%d, v8, %s, s50 offen sc1", 10 + n, sr(S_WS))
        if n < 2: a("s_add_u32 s50, s50, 8192")
    a("s_waitcnt vmcnt(0)")
    for n in range(3): a("v_xor_b32 v%d, s%d, v%d", 10 + n, TAG, 10 + n)
    a("v_or3_b32 v10, v10, v11, v12")
    a("v_cmp_ne_u32 vcc, 0, v10")
    poll_end(a, "FF_ek", "FF_eok", 0)
    a("v_mov_b32 v10, s%d", TAG)
    a("s_mov_b32 s6, 0x%x", EPOCH_OFF)
    a("s_mov_b64 exec, 1")
    a("buffer_store_dword v10, off, %s, s6 sc1", sr(S_WS))
    a("s_mov_b64 exec, -1")
    a("s_branch FF_end")

def ffn_w2(a):
    BL = [32 + 32 * i for i in range(7)]
    srd(a, S_D, P_D, 1536 * 1280)
    a("s_sub_u32 s48, s3, 4")
    a("s_mul_i32 s54, s44, %d", 64 * 1280)
    a("s_lshl_b32 s55, s48, 8")
    a("s_add_u32 s54, s54, s55")
    a("v_mul_u32_u24 v24, %d, v3", 8 * 1280)
    a("v_lshl_add_u32 v24, v6, 4, v24")
    a("s_barrier")
    a("s_cmp_lg_u32 s3, 7")
    a("s_cbranch_scc1 FF_b1")
    a("s_setprio 3")
    a("v_lshlrev_b32 v8, 4, v2")
    a("s_mov_b32 s50, 0x%x", KEY2_OFF)
    poll_begin(a, "FF_kp")
    for i in range(4):
        a("buffer_load_dwordx4 %s, v8, %s, s50 offen offset:%d sc1", vr(32 + 4 * i, 4), sr(S_WS), i * 1024)
    a("s_waitcnt vmcnt(0)")
    a("v_mov_b32 v10, 0")
    for i in range(8):
        a("v_xor_b32 v11, s%d, v%d", TAG, 33 + 2 * i)
        a("v_or_b32 v10, v10, v11")
    a("v_cmp_ne_u32 vcc, 0, v10")
    poll_end(a, "FF_kp", "FF_kok", 8)
    stamp(a, 2)
    a("v_mov_b32 v10, v32"); a("v_mov_b32 v11, v34")
    for i in range(2, 8):
        a("v_med3_u32 v11, v10, v11, v%d", 32 + 2 * i)
        a("v_max_u32 v10, v10, v%d", 32 + 2 * i)
    a("v_mov_b32 v12, v10")
    wave_umax(a, 12, 50)
    a("v_cmp_eq_u32 vcc, s50, v10")
    a("v_cndmask_b32 v12, v10, v11, vcc")
    wave_umax(a, 12, 51)
    a("s_and_b32 s52, s50, 0xffff")
    a("s_lshl_b32 s53, s51, 16")
    a("s_or_b32 s52, s52, s53")
    a("v_mov_b32 v16, s52"); a("v_mov_b32 v17, s%d", TAG)
    a("v_mov_b32 v18, s50"); a("v_mov_b32 v19, s51")
    a("v_mov_b32 v8, %d", F_TOP)
    a("ds_write_b128 v8, v[16:19]")
    a("s_cmp_lg_u32 s44, 0")
    a("s_cbranch_scc1 FF_notop")
    a("s_mov_b64 exec, 1")
    a("s_mov_b32 s6, 0x%x", TOP_OFF)
    a("buffer_store_dwordx2 v[16:17], off, %s, s6 sc1", sr(S_WS))
    a("s_mov_b64 exec, -1")
    a.label("FF_notop")
    a("s_waitcnt lgkmcnt(0)")
    a("s_setprio 0")
    a.label("FF_b1")
    a("s_barrier")
    a("s_sleep 2")
    def dload(blk, off):
        for j in range(8):
            if j % 4 == 0: a("s_add_u32 s55, s54, %d", off + (j // 4) * 5120)
            a("buffer_load_dwordx4 %s, v24, %s, s55 offen offset:%d", vr(blk + 4 * j, 4), sr(S_D), (j % 4) * 1280)
    dload(BL[1], 0); dload(BL[2], 32 * 1280)
    a("s_cmp_lg_u32 s3, 4")
    a("s_cbranch_scc1 FF_d1")
    dload(BL[3], 1024); dload(BL[4], 32 * 1280 + 1024)
    a.label("FF_d1")
    a("v_and_b32 v26, 1, v2")
    a("v_lshlrev_b32 v26, 7, v26")
    a("v_lshl_add_u32 v26, v3, 4, v26")
    a("v_add_u32 v26, %d, v26", F_H)
    a("s_lshl_b32 s50, s48, 10")
    a("s_add_u32 s50, s50, %d", F_P2)
    a("v_lshlrev_b32 v29, 9, v6")
    a("v_lshl_add_u32 v29, v3, 4, v29")
    a("v_add_u32 v29, s50, v29")
    a("v_and_b32 v30, 3, v2")
    a("v_lshlrev_b32 v30, 5, v30")
    a("v_lshrrev_b32 v31, 2, v2")
    a("v_add_lshl_u32 v30, v30, v31, 2")
    a("v_add_u32 v30, s50, v30")
    a("v_lshlrev_b32 v31, 4, v2")
    smov64(a, 52, 0x0003000300030003)
    a("s_mul_i32 s56, s44, 10240")
    a("s_lshl_b32 s50, s48, 10")
    a("s_add_u32 s56, s56, s50")
    a("s_add_u32 s56, s56, 0x%x", Y_OFF)
    a("s_barrier")
    a("s_waitcnt vmcnt(0)")
    perm_unit(a, BL[1], BL[0], 46, 47)
    perm_unit(a, BL[2], BL[1], 46, 47)
    a("s_cmp_lg_u32 s3, 4")
    a("s_cbranch_scc1 FF_d2")
    perm_unit(a, BL[3], BL[2], 46, 47)
    perm_unit(a, BL[4], BL[3], 46, 47)
    a.label("FF_d2")
    a("s_barrier")
    stamp(a, 4)
    a("ds_read_b128 v[16:19], v26")
    a("ds_read_b128 v[20:23], v26 offset:64")
    a("v_mov_b32 v9, s%d", TAG); a("v_mov_b32 v11, s%d", TAG)
    a("v_mov_b32 v13, s%d", TAG); a("v_mov_b32 v15, s%d", TAG)
    def f2(b0, yoff):
        a("s_waitcnt lgkmcnt(0)")
        for kk in range(2):
            for t in range(8):
                d = vr(BL[6] + 4 * t, 4)
                a("v_mfma_f32_16x16x32_bf16 %s, %s, %s, %s", d, vr(BL[b0 + kk] + 4 * t, 4), vr(16 + 4 * kk, 4), d if kk else "0")
        a("s_mov_b64 exec, s[52:53]")
        for t in range(8):
            a("ds_write_b128 v29, %s offset:%d", vr(BL[6] + 4 * t, 4), t * 64)
        a("s_mov_b64 exec, -1")
        a("ds_read_b32 v8, v30")
        a("ds_read_b32 v10, v30 offset:64")
        a("ds_read_b32 v12, v30 offset:512")
        a("ds_read_b32 v14, v30 offset:576")
        a("s_add_u32 s50, s56, %d", yoff)
        a("s_add_u32 s51, s50, 5120")
        a("s_waitcnt lgkmcnt(2)")
        a("buffer_store_dwordx4 v[8:11], v31, %s, s50 offen sc1", sr(S_WS))
        a("s_waitcnt lgkmcnt(0)")
        a("buffer_store_dwordx4 v[12:15], v31, %s, s51 offen sc1", sr(S_WS))
    f2(0, 0)
    a("s_cmp_lg_u32 s3, 4")
    a("s_cbranch_scc1 FF_end")
    f2(2, 4096)

def ffn_ids(a):
    a("s_sub_u32 s44, s5, 29")
    a("s_lshl_b32 s44, s44, 3")
    a("s_add_u32 s44, s44, s4")
    a("s_mov_b32 s46, 0x05040100")
    a("s_mov_b32 s47, 0x07060302")

def body():
    a = Asm()
    entry(a)
    a("s_cmp_ge_u32 s5, 24")
    a("s_cbranch_scc1 K_other")
    a("s_cmp_lt_u32 s3, 4")
    a("s_cbranch_scc1 K_L")
    p1_setup(a)
    p1_compute(a)
    a.label("K_p2C")
    p2_compute(a)
    a.label("K_flush")
    stamp(a, 7)
    stamp_flush(a, [OPT['sw0'], OPT['sw1']])
    a("s_endpgm")
    a.label("K_L")
    p1_loader(a)
    a.label("K_p2L")
    p2_loader(a)
    a.label("K_other")
    a("s_cmp_lt_u32 s3, 4")
    a("s_cbranch_scc1 K_otherL")
    a("s_setprio 2")
    rpass(a)
    a("s_setprio 0")
    stamp(a, 1)
    a("s_cmp_ge_u32 s5, 29")
    a("s_cbranch_scc1 K_ffn2")
    p2_scalars(a)
    a("s_cmp_eq_u32 s63, 0")
    a("s_cbranch_scc1 K_end")
    srd(a, S_OUT, P_OUT, 2048 * 1280)
    p2_waddr(a, 20)
    a("v_mov_b32 v16, %d", L_TG)
    a("v_mov_b32 v17, s%d", TAG)
    a("ds_write_b32 v16, v17")
    a("s_cmp_lg_u32 s3, 4")
    a("s_cbranch_scc1 HC_go")
    poll_begin(a, "HC_poll")
    a("s_sleep 32")
    a("s_mov_b32 s6, 0x%x", TOP_OFF)
    a("buffer_load_dwordx2 v[16:17], off, %s, s6 sc1", sr(S_WS))
    a("s_waitcnt vmcnt(0)")
    a("v_cmp_ne_u32 vcc, s%d, v17", TAG)
    poll_end(a, "HC_poll", "HC_go", 0)
    a("s_waitcnt lgkmcnt(0)")
    a("s_barrier")
    a("s_branch K_p2C")
    a.label("K_otherL")
    a("s_cmp_ge_u32 s5, 29")
    a("s_cbranch_scc1 K_ffn1")
    helper_loader(a)
    a("s_branch K_p2L")
    p1_slow(a)
    upd_apply(a, (2,), UPC, "c")
    upd_apply(a, (0, 1), UP, "l")
    a.label("K_ffn1")
    ffn_ids(a)
    ffn_w13(a)
    a.label("K_ffn2")
    ffn_ids(a)
    ffn_w2(a)
    a.label("FF_end")
    stamp(a, 7)
    if gen.STAMPS: srd(a, S_WS, P_WS, WS_BYTES)
    stamp_flush(a, [0, 7], 1)
    a.label("K_end")
    a("s_endpgm")
    return a

if __name__ == "__main__":
    out = "v4.s"
    for x in sys.argv[1:]:
        if x == "stamps": gen.STAMPS = True
        elif x == "cyc": gen.CYC = True
        elif x.startswith("out="): out = x[4:]
        elif "=" in x:
            k, v = x.split("="); OPT[k] = int(v)
    k = NAME + "_kernel"
    t = hazard.fix(body().text())
    if OPT['align']: t = align.fix(t)
    open(out, "w").write(module([(k, 256, 512, LDS_ALL)], [(k, t, 256, 102, 256)]))
```

```python
import sys
import gen
from gen import (f32, sr, vr, srd, wave_umax, norm8, perm_unit, bf16r, smov64, stamp_init, stamp_flush, Asm, module, NAME,
                 S_X, S_WQKV, S_WS, S_WO, S_OUT, S_WR, S_D, S_U, P_X, P_WQKV, P_WO, P_WR, P_G, P_U, P_D, P_OUT, P_WS,
                 WS_BYTES, OOB, TOP_OFF, Y_OFF, O_OFF, NEG, CEXP)
import hazard, align

OPT = dict(wthr=0, gap=5, vw0=0, vrdy=2, st3=0, xa=32, xb=50, vpos=1, rot=1, wow=1, fa=0, hint=1, wa=1, wb=2, st2=0, wo1=11, xnpos=0, latewo=0, align=1, nodma=0, S0=3, spin=1 << 18, thr=1, codepf=1, nlines=256, fsleep=2, ysleep=24, sw0=0, sw1=4, diag=0, nomf=0)
def stamp(a, i, L=False):
    if L and OPT["diag"]:
        if i == 3: gen.stamp(a, 6)
        return
    gen.stamp(a, i)

EPOCH_OFF = 0x18000
UPD_OFF = 0x1a000
FLAG_OFF = 0x60000
KEY2_OFF = 0x8000
L_W = 0
L_X = 65536
L_VT = 131072
L_ST = L_VT + 18432
L_XR = L_ST + 1024
L_S2 = L_XR + 12288
L_TP = L_S2 + 384
assert L_TP + 64 <= 163840
LDS_ALL = 163840
TAG = 60
S_O = 32
sNP, sT0, sCOL = 40, 42, 43
DUMP = 255
DUMPL = 31

def load_ptrs(a):
    a("s_load_dwordx16 s[64:79], s[0:1], 0")
    a("s_load_dwordx2 s[80:81], s[0:1], 64")
    a("s_load_dwordx2 s[84:85], s[0:1], 80")
def poll_begin(a, name):
    a("s_mov_b32 s59, %d", OPT["spin"])
    a.label(name)
def poll_end(a, name, done, sleep=1):
    a("s_cbranch_vccz %s", done)
    if sleep: a("s_sleep %d", sleep)
    a("s_sub_u32 s59, s59, 1")
    a("s_cmp_lg_u32 s59, 0")
    a("s_cbranch_scc1 %s", name)
    a.label(done)
def epoch_load(a):
    a("s_add_u32 s48, s%d, 0x%x", P_WS, EPOCH_OFF)
    a("s_addc_u32 s49, s%d, 0", P_WS + 1)
    a("s_load_dword s%d, s[48:49], 0", TAG)
def tag_ready(a):
    a("s_waitcnt lgkmcnt(0)")
    a("s_add_u32 s%d, s%d, 1", TAG, TAG)

def entry(a):
    a("s_cmp_ge_u32 s2, 256")
    a("s_cbranch_scc1 K_end")
    stamp(a, 0)
    load_ptrs(a)
    if OPT["codepf"]:
        a("s_cmp_lt_u32 s2, 192")
        a("s_cbranch_scc1 EN_nopf")
        a("s_getpc_b64 s[48:49]")
        a("s_and_b32 s48, s48, 0xffffff00")
        a("v_lshlrev_b32 v7, 7, v0")
        a("v_cmp_gt_u32 vcc, %d, v0", OPT["nlines"])
        a("s_and_saveexec_b64 s[50:51], vcc")
        a("s_cbranch_execz EN_nopf2")
        a("global_load_dword v%d, v7, s[48:49]", DUMPL)
        a.label("EN_nopf2")
        a("s_mov_b64 exec, s[50:51]")
        a.label("EN_nopf")
    stamp_init(a)
    a("v_lshrrev_b32 v1, 6, v0")
    a("v_and_b32 v2, 63, v0")
    a("v_readfirstlane_b32 s3, v1")
    a("s_mov_b32 s7, 0xffff0000")
    a("s_and_b32 s4, s2, 7")
    a("s_lshr_b32 s5, s2, 3")
    a("s_and_b32 s44, s4, 1")
    a("s_lshl_b32 s44, s44, 2")
    a("s_and_b32 s6, s5, 3")
    a("s_add_u32 s44, s44, s6")
    a("s_lshr_b32 s47, s4, 1")
    a("s_mul_i32 s47, s47, 6")
    a("s_lshr_b32 s6, s5, 2")
    a("s_add_u32 s47, s47, s6")
    a("s_lshr_b32 s45, s4, 2")
    a("s_mul_i32 s6, s45, 12")
    a("s_sub_u32 s6, s47, s6")
    a("s_mul_i32 s46, s6, 88")
    a("v_lshrrev_b32 v3, 4, v2")
    a("v_bfe_u32 v4, v2, 2, 2")
    a("v_and_b32 v5, 3, v2")
    a("v_and_b32 v6, 15, v2")

def p2_scalars(a):
    a("s_mul_i32 s6, s4, 27")
    a("s_add_u32 s6, s6, s5")
    a("s_mul_i32 s61, s6, 205")
    a("s_lshr_b32 s61, s61, 10")
    a("s_mul_i32 s62, s61, 5")
    a("s_sub_u32 s62, s6, s62")
    a("s_cmp_lt_u32 s6, 215")
    a("s_cselect_b32 s63, 1, 0")
    a("s_cmp_lt_u32 s5, 27")
    a("s_cselect_b32 s63, s63, 0")
    a("s_and_b32 s%d, s3, 3", sNP)
    a("s_mul_i32 s%d, s61, 48", sT0)
    a("s_lshl_b32 s%d, s62, 8", sCOL)
    a("s_lshl_b32 s6, s%d, 6", sNP)
    a("s_add_u32 s%d, s%d, s6", sCOL, sCOL)

def pf_setup(a, s_unit, uid):
    lx, le = "PF_x%s" % uid, "PF_e%s" % uid
    a("s_cmp_ge_u32 s%d, 15", s_unit)
    a("s_cbranch_scc1 %s", lx)
    a("s_lshl_b32 s48, s%d, 6", s_unit)
    a("v_add_u32 v9, s48, v2")
    a("v_mul_u32_u24 v10, 4370, v9")
    a("v_lshrrev_b32 v10, 16, v10")
    a("v_mul_u32_u24 v11, 15, v10")
    a("v_sub_u32 v9, v9, v11")
    a("v_mul_u32_u24 v11, 52, v9")
    a("v_lshrrev_b32 v11, 8, v11")
    a("v_mul_u32_u24 v10, 3840, v10")
    a("v_mul_u32_u24 v11, 640, v11")
    a("v_lshl_add_u32 v8, v9, 7, v10")
    a("s_and_b32 s48, s4, 1")
    a("s_mul_i32 s48, s48, 640")
    a("v_add3_u32 v8, v8, v11, s48")
    a("s_mov_b32 s50, 1")
    a("s_branch %s", le)
    a.label(lx)
    a("s_sub_u32 s48, s%d, 15", s_unit)
    a("s_lshl_b32 s48, s48, 6")
    a("s_xor_b32 s49, s4, 1")
    a("s_and_b32 s49, s49, 3")
    a("s_lshl_b32 s49, s49, 8")
    a("s_add_u32 s48, s48, s49")
    a("s_cmp_eq_u32 s%d, 19", s_unit)
    a("s_cselect_b32 s48, 512, s48")
    a("s_cselect_b32 s49, 15, 63")
    a("v_and_b32 v9, s49, v2")
    a("v_add_u32 v9, s48, v9")
    a("v_mul_u32_u24 v9, 2560, v9")
    a("s_mul_i32 s48, s45, 1280")
    a("v_add_u32 v8, s48, v9")
    a("s_mov_b32 s50, 0")
    a.label(le)

def pf_issue(a, s_stage, uid):
    DUMP = 255 if uid == 'g' else DUMPL
    lx, le = "PI_x%s" % uid, "PI_e%s" % uid
    a("s_cmp_eq_u32 s50, 0")
    a("s_cbranch_scc1 %s", lx)
    a("s_mul_i32 s48, s%d, %d", s_stage, 64 * 3840)
    a("buffer_load_dword v%d, v8, %s, s48 offen", DUMP, sr(S_WQKV))
    a("s_branch %s", le)
    a.label(lx)
    a("s_lshl_b32 s48, s%d, 7", s_stage)
    a("buffer_load_dword v%d, v8, %s, s48 offen", DUMP, sr(S_X))
    a.label(le)

def row16_sum(a, v):
    for d in ("quad_perm:[1,0,3,2]", "quad_perm:[2,3,0,1]", "row_half_mirror", "row_mirror"):
        a("v_add_f32_dpp v%d, v%d, v%d %s row_mask:0xf bank_mask:0xf", v, v, v, d)

def rpass(a):
    a("s_waitcnt lgkmcnt(0)")
    srd(a, S_X, P_X, 2048 * 1280)
    epoch_load(a)
    a("s_and_b32 s52, s4, 3")
    a("s_lshl_b32 s52, s52, 8")
    a("s_sub_u32 s53, s5, 24")
    a("s_lshl_b32 s53, s53, 5")
    a("s_add_u32 s52, s52, s53")
    a("s_sub_u32 s53, s3, 4")
    a("s_lshl_b32 s53, s53, 3")
    a("s_add_u32 s52, s52, s53")
    a("s_mul_i32 s53, s52, 2560")
    a("s_mul_i32 s54, s45, 1280")
    a("s_add_u32 s53, s53, s54")
    a("s_add_u32 s54, s53, %d", 4 * 2560)
    a("v_lshlrev_b32 v7, 4, v6")
    a("v_mul_u32_u24 v8, 2560, v3")
    a("v_add_u32 v8, v8, v7")
    X0, X1, WRr, F = 16, 36, 56, 76
    for p, X in enumerate((X0, X1)):
        for n in range(5):
            a("buffer_load_dwordx4 %s, v8, %s, s%d offen offset:%d", vr(X + 4 * n, 4), sr(S_X), 53 + p, 256 * n)
    srd(a, S_WR, P_WR, 1280)
    for n in range(5):
        a("buffer_load_dwordx4 %s, v7, %s, 0 offen offset:%d", vr(WRr + 4 * n, 4), sr(S_WR), 256 * n)
    srd(a, S_WS, P_WS, WS_BYTES)
    a("s_lshl_b32 s55, s45, 10")
    a("s_add_u32 s55, s55, s52")
    a("v_lshrrev_b32 v9, 3, v2")
    a("s_mov_b32 s56, %d", 2048 * 160)
    a("v_mul_lo_u32 v9, v9, s56")
    a("v_and_b32 v10, 7, v2")
    a("v_lshl_add_u32 v9, v10, 4, v9")
    a("s_mul_i32 s56, s55, 160")
    a("s_add_u32 s56, s56, 0x%x", O_OFF)
    for i in range(4): a("v_mov_b32 v%d, -1", 132 + i)
    for i in range(10 if OPT["hint"] else 0):
        a("buffer_store_dwordx4 v[132:135], v9, %s, s56 offen offset:%d sc1", sr(S_WS), 128 * i)
    a("s_mov_b32 s56, 0x%x", f32(1.0 / 640))
    T = 120
    for p, X in enumerate((X0, X1)):
        if p == 0: a("s_waitcnt vmcnt(%d)", 20 if OPT["hint"] else 10)
        for d in range(20):
            a("v_lshlrev_b32 v%d, 16, v%d", F + 2 * d, X + d)
            a("v_and_b32 v%d, s7, v%d", F + 2 * d + 1, X + d)
        a("v_pk_add_f32 %s, %s, %s", vr(T, 2), vr(F, 2), vr(F + 2, 2))
        a("v_pk_add_f32 %s, %s, %s", vr(T + 2, 2), vr(F + 4, 2), vr(F + 6, 2))
        for d in range(4, 20):
            r = T + 2 * (d % 2)
            a("v_pk_add_f32 %s, %s, %s", vr(r, 2), vr(r, 2), vr(F + 2 * d, 2))
        a("v_pk_add_f32 %s, %s, %s", vr(T, 2), vr(T, 2), vr(T + 2, 2))
        a("v_add_f32 v%d, v%d, v%d", T, T, T + 1)
        row16_sum(a, T)
        a("v_mul_f32 v%d, s56, v%d", T + 4, T)
        for d in range(20):
            r = T + 6 + 2 * (d % 2)
            a("v_pk_add_f32 %s, %s, %s op_sel_hi:[1,0] neg_lo:[0,1] neg_hi:[0,1]", vr(r, 2), vr(F + 2 * d, 2), vr(T + 4, 2))
            q = T + 2 * (d % 2)
            if d < 2: a("v_pk_mul_f32 %s, %s, %s", vr(q, 2), vr(r, 2), vr(r, 2))
            else: a("v_pk_fma_f32 %s, %s, %s, %s", vr(q, 2), vr(r, 2), vr(r, 2), vr(q, 2))
        a("v_pk_add_f32 %s, %s, %s", vr(T, 2), vr(T, 2), vr(T + 2, 2))
        a("v_add_f32 v%d, v%d, v%d", T, T, T + 1)
        row16_sum(a, T)
        a("v_mul_f32 v%d, s56, v%d", T, T)
        a("v_cvt_pk_bf16_f32 v%d, v%d, v%d", T + 2, T + 4, T)
        a("v_and_b32 v%d, s7, v%d", T, T + 2)
        a("v_add_f32 v%d, 0x%x, v%d", T, f32(1e-5), T)
        bf16r(a, T, 7)
        a("v_sqrt_f32 v%d, v%d", T, T)
        bf16r(a, T, 7)
        a("v_rcp_f32 v%d, v%d", T + 5, T)
        a("v_lshlrev_b32 v%d, 16, v%d", T + 4, T + 2)
        a("v_bfi_b32 v%d, s7, v%d, v%d", 10 + 2 * p, T, T + 2)
        for d in range(20):
            a("v_pk_add_f32 %s, %s, %s op_sel_hi:[1,0] neg_lo:[0,1] neg_hi:[0,1]", vr(F + 2 * d, 2), vr(F + 2 * d, 2), vr(T + 4, 2))
        for d in range(20):
            a("v_cvt_pk_bf16_f32 v%d, v%d, v%d", X + d, F + 2 * d, F + 2 * d + 1)
        for d in range(20):
            a("v_lshlrev_b32 v%d, 16, v%d", F + 2 * d, X + d)
            a("v_and_b32 v%d, s7, v%d", F + 2 * d + 1, X + d)
        for d in range(20):
            a("v_pk_mul_f32 %s, %s, %s op_sel:[0,1]", vr(F + 2 * d, 2), vr(F + 2 * d, 2), vr(T + 4, 2))
        for d in range(20):
            a("v_cvt_pk_bf16_f32 v%d, v%d, v%d", X + d, F + 2 * d, F + 2 * d + 1)
        if p == 0: a("s_waitcnt vmcnt(0)")
        a("v_mov_b32 v%d, 0", T)
        a("v_mov_b32 v%d, 0", T + 1)
        for d in range(20):
            a("v_dot2c_f32_bf16 v%d, v%d, v%d", T + d % 2, X + d, WRr + d)
        a("v_add_f32 v%d, v%d, v%d", T, T, T + 1)
        row16_sum(a, T)
        a("v_cvt_pk_bf16_f32 v%d, v%d, v%d", T, T, T)
        a("v_ashrrev_i32 v%d, 31, v%d", T + 1, T)
        a("v_or_b32 v%d, 0x80000000, v%d", T + 1, T + 1)
        a("v_xor_b32 v%d, v%d, v%d", T, T, T + 1)
        a("v_add_u32 v%d, s55, v3", T + 1)
        if p: a("v_add_u32 v%d, 4, v%d", T + 1, T + 1)
        a("v_bfi_b32 v%d, s7, v%d, v%d", 14 + p, T, T + 1)
        if p == 0:
            tag_ready(a)
            a("v_mov_b32 v11, s%d", TAG)
            a("v_mov_b32 v13, s%d", TAG)
            a("v_lshlrev_b32 v9, 3, v3")
            a("s_lshl_b32 s57, s55, 3")
            smov64(a, 52, 0x0001000100010001)
        a("s_mov_b64 exec, s[52:53]")
        a("buffer_store_dwordx2 %s, v9, %s, s57 offen offset:%d sc1", vr(10 + 2 * p, 2), sr(S_WS), 32 * p)
        a("s_mov_b64 exec, -1")
    a("v_max_u32 v16, v14, v15")
    a("v_min_u32 v18, v14, v15")
    for swap in ("v_permlane32_swap_b32", "v_permlane16_swap_b32"):
        a("v_mov_b32 v20, v16"); a("v_mov_b32 v21, v18")
        a("%s v16, v20", swap); a("%s v18, v21", swap)
        a("v_min_u32 v22, v16, v20")
        a("v_max_u32 v16, v16, v20")
        a("v_max3_u32 v18, v18, v21, v22")
    a("v_mov_b32 v17, s%d", TAG)
    a("v_mov_b32 v19, s%d", TAG)
    a("s_lshl_b32 s57, s55, 1")
    a("s_add_u32 s57, s57, 0x%x", KEY2_OFF)
    a("s_mov_b64 exec, 1")
    a("buffer_store_dwordx4 v[16:19], off, %s, s57 sc1", sr(S_WS))
    a("s_mov_b64 exec, -1")

vX, vW, vST, vWO, vXR, vS2, vFL, vO, vSC = 128, 131, 132, 133, 134, 137, 138, 140, 145
D2 = 2048 * 160 - 2560
def l_setup(a):
    srd(a, S_WO, P_WO, 640 * 1280)
    srd(a, S_WS, P_WS, WS_BYTES)
    srd(a, S_OUT, P_OUT, 2048 * 1280)
    a("s_lshr_b32 s48, s3, 1")
    a("s_lshl_b32 s48, s48, 2")
    a("v_add_u32 v50, s48, v3")
    a("v_lshlrev_b32 v50, 1, v50")
    a("v_sub_u32 v50, v2, v50")
    a("v_and_b32 v50, 15, v50")
    a("s_lshl_b32 s48, s3, 2")
    a("v_add_u32 v51, s48, v3")
    a("v_mul_u32_u24 v51, 1280, v51")
    a("v_lshl_add_u32 v51, v50, 4, v51")
    a("s_lshl_b32 s48, s62, 8")
    a("v_add_u32 v%d, s48, v51", vWO)
    a("s_lshl_b32 s58, s3, 10")
    for aa in range(4):
        a("s_add_u32 s48, s61, %d", aa)
        a("s_and_b32 s48, s48, %d", 3)
        if not OPT["rot"]: a("s_mov_b32 s48, %d", aa)
        a("s_mul_i32 s%d, s48, %d", 28 + aa, 160 * 1280)
    a("s_mul_i32 s49, s3, 5120")
    a("v_lshl_add_u32 v%d, v2, 4, s49", vSC)
    p2_waddr(a, 20, False)
    a("s_mov_b32 s50, s%d", sT0)
    a("s_add_u32 s51, s50, 47")
    a("s_min_u32 s51, s51, 2047")
    for sreg in (50, 51):
        a("s_lshr_b32 s6, s%d, 10", sreg)
        a("s_mul_i32 s6, s6, 12")
        a("s_and_b32 s%d, s%d, 1023", sreg, sreg)
        a("s_mul_i32 s%d, s%d, 745", sreg, sreg)
        a("s_lshr_b32 s%d, s%d, 16", sreg, sreg)
        a("s_add_u32 s%d, s%d, s6", sreg, sreg)
    a("s_sub_u32 s51, s51, s50")
    a("s_lshl_b32 s51, s51, 10")
    a("v_bfe_u32 v50, v2, 2, 1")
    a("v_mul_u32_u24 v50, s51, v50")
    a("v_bfe_u32 v51, v2, 3, 1")
    a("v_lshl_add_u32 v50, v51, 7, v50")
    a("v_lshl_add_u32 v50, v5, 2, v50")
    a("s_lshl_b32 s50, s50, 2")
    a("s_add_u32 s50, s50, s3")
    a("s_lshl_b32 s50, s50, 8")
    a("s_add_u32 s50, s50, 0x%x", FLAG_OFF)
    a("v_add_u32 v%d, s50, v50", vFL)
    a("s_mul_i32 s50, s3, %d", 2 * 2048 * 160)
    a("s_mul_i32 s51, s61, 7680")
    a("s_add_u32 s50, s50, s51")
    a("s_add_u32 s50, s50, 0x%x", O_OFF)
    a("v_lshl_add_u32 v%d, v2, 4, s50", vO)
    a("v_add_u32 v%d, 1024, v%d", vO + 1, vO)
    a("v_add_u32 v50, 2048, v%d", vO)
    a("v_add_u32 v51, 0x%x, v%d", 2048 + D2, vO)
    a("v_cmp_gt_u32 vcc, 32, v2")
    a("v_cndmask_b32 v%d, v51, v50, vcc", vO + 2)
    a("v_add_u32 v%d, 0x%x, v%d", vO + 3, 3072 + D2, vO)
    a("v_add_u32 v%d, 0x%x, v%d", vO + 4, 4096 + D2, vO)
    a("s_lshl_b32 s50, s3, 2")
    a("v_add_u32 v50, s50, v3")
    a("v_xor_b32 v51, v50, v2")
    a("v_and_b32 v51, 15, v51")
    a("s_lshl_b32 s50, s62, 8")
    a("v_lshl_add_u32 v51, v51, 4, s50")
    a("v_add_u32 v50, s%d, v50", sT0)
    a("s_movk_i32 s51, 1280")
    for n in range(3):
        a("v_add_u32 v52, %d, v50", 16 * n)
        a("v_min_u32 v52, 2047, v52")
        a("v_lshrrev_b32 v54, 10, v52")
        a("v_and_b32 v52, 1023, v52")
        a("v_lshl_add_u32 v52, v52, 1, v54")
        a("v_mad_u32_u24 v%d, v52, s51, v51", vXR + n)
    a("s_lshl_b32 s50, s%d, 3", sT0)
    a("v_lshl_add_u32 v%d, v2, 4, s50", vS2)

def wo_issue(a, units, thr=None):
    for u in units:
        aa, c = u // 5, u % 5
        for h in range(2):
            if thr is not None: a("s_waitcnt vmcnt(%d)", thr)
            a("s_add_u32 m0, s58, %d", u * 8192 + h * 4096)
            a("s_add_u32 s48, s%d, %d", 28 + aa, (c * 16 + h * 80) * 1280)
            a("buffer_load_dwordx4 v%d, %s, s48 offen lds", vWO, sr(S_WO))
def early_units(): return list(range(OPT["wo1"])) + list(range(11, 16))
def late_units(): return [u for u in range(20) if u not in early_units()]

def res_dma(a):
    a("s_lshl_b32 s48, s3, 10")
    for n in range(3):
        a("s_add_u32 m0, s48, %d", L_XR + n * 4096)
        a("buffer_load_dwordx4 v%d, %s, 0 offen lds", vXR + n, sr(S_X))
    a("s_mov_b32 m0, %d", L_S2)
    a("s_mov_b64 exec, 0xffffff")
    a("buffer_load_dwordx4 v%d, %s, 0 offen sc1 lds", vS2, sr(S_WS))
    a("s_mov_b32 m0, %d", L_TP)
    a("s_mov_b64 exec, 1")
    a("s_mov_b32 s48, 0x%x", TOP_OFF)
    a("buffer_load_dwordx4 off, %s, s48 sc1 lds", sr(S_WS))
    a("s_mov_b64 exec, -1")

def p1_loader(a):
    a("v_lshrrev_b32 v50, 3, v2")
    a("s_lshl_b32 s6, s3, 3")
    a("v_add_u32 v50, s6, v50")
    a("v_lshrrev_b32 v51, 1, v50")
    a("v_xor_b32 v51, v51, v2")
    a("v_and_b32 v51, 7, v51")
    a("v_lshlrev_b32 v51, 4, v51")
    a("s_mul_i32 s6, s45, 1280")
    a("v_add_u32 v51, s6, v51")
    a("s_sub_u32 s6, s46, 8")
    a("v_add_u32 v50, s6, v50")
    a("s_movk_i32 s49, 2560")
    a("v_mov_b32 v53, 0x%x", OOB)
    for n in range(3):
        a("v_add_u32 v52, %d, v50", 32 * n)
        a("v_mad_u32_u24 v%d, v52, s49, v51", vX + n)
        a("v_cmp_gt_u32 vcc, 1024, v52")
        a("v_cndmask_b32 v%d, v53, v%d, vcc", vX + n, vX + n)
    a("s_lshl_b32 s54, s3, 10")
    a("s_add_u32 s54, s54, %d", L_X)
    a("s_cmp_eq_u32 s3, 0")
    a("s_cselect_b32 s56, 0xffffff00, -1")
    a("s_mov_b32 s57, -1")
    a("s_and_b32 s50, s3, 1")
    a("s_lshr_b32 s51, s3, 1")
    a("s_lshl_b32 s53, s51, 2")
    a("s_add_u32 s53, s53, s50")
    a("s_add_u32 s51, s53, s50")
    a("v_lshrrev_b32 v50, 5, v2")
    a("v_add_u32 v51, s51, v50")
    a("v_lshlrev_b32 v51, 1, v51")
    a("v_sub_u32 v51, v2, v51")
    a("v_and_b32 v51, 31, v51")
    a("v_mul_u32_u24 v52, 47, v51")
    a("v_lshrrev_b32 v52, 9, v52")
    a("v_mul_u32_u24 v54, 11, v52")
    a("v_sub_u32 v54, v51, v54")
    a("v_mul_u32_u24 v52, 1280, v52")
    a("v_lshl_add_u32 v52, v54, 4, v52")
    a("s_lshl_b32 s51, s53, 1")
    a("v_add_u32 v50, s51, v50")
    a("v_mul_u32_u24 v50, 3840, v50")
    a("s_mul_i32 s51, s44, 160")
    a("v_add3_u32 v%d, v50, v52, s51", vW)
    a("v_cmp_gt_u32 vcc, 10, v54")
    a("v_cndmask_b32 v%d, v53, v%d, vcc", vW, vW)
    a("s_lshl_b32 s55, s53, 10")
    def issue_x(par):
        for n in range(3):
            a("s_add_u32 m0, s54, %d", par * 12288 + n * 4096)
            if n == 0: a("s_mov_b64 exec, s[56:57]")
            if not OPT["nodma"]: a("buffer_load_dwordx4 v%d, %s, s52 offen lds", vX + n, sr(S_X))
            if n == 0: a("s_mov_b64 exec, -1")
        a("s_add_u32 s52, s52, 128")
    def issue_w(slab):
        for di in (0, 2, 8, 10):
            a("s_add_u32 m0, s55, %d", L_W + slab * 16384 + di * 1024)
            a("s_add_u32 s51, s53, %d", 2 * di * 3840)
            if not OPT["nodma"]: a("buffer_load_dwordx4 v%d, %s, s51 offen lds", vW, sr(S_WQKV))
        a("s_add_u32 s53, s53, %d", 32 * 3840)
    a("s_mov_b32 s52, 0")
    a("s_mov_b32 s53, 0")
    a("s_waitcnt lgkmcnt(0)")
    srd(a, S_X, P_X, 2048 * 1280)
    issue_x(0)
    srd(a, S_WQKV, P_WQKV, 640 * 3840)
    issue_w(0)
    issue_w(1)
    epoch_load(a)
    p2_scalars(a)
    l_setup(a)
    a("v_lshlrev_b32 v50, 1, v2")
    a("s_sub_u32 s6, s46, 8")
    a("v_add_u32 v50, s6, v50")
    a("s_lshl_b32 s6, s45, 10")
    a("v_add_lshl_u32 v%d, v50, s6, 3", vST)
    a("v_cmp_gt_u32 vcc, 1024, v50")
    a("v_cndmask_b32 v%d, v53, v%d, vcc", vST, vST)
    tag_ready(a)
    stamp(a, 1, True)
    a("s_waitcnt vmcnt(4)")
    if OPT["diag"]: gen.stamp(a, 1)
    a("s_barrier")
    issue_w(2)
    issue_x(1)
    issue_w(3)
    def step(i):
        q = i % 4
        a("s_waitcnt vmcnt(%d)", 8 if q % 2 == 0 else 11)
        if OPT["diag"] and i in (3, 7, 11, 15): gen.stamp(a, {3: 2, 7: 3, 11: 4, 15: 5}[i])
        a("s_barrier")
    def issue(i):
        q = i % 4
        if q % 2 == 0: issue_x((q // 2 + 1) % 2)
        issue_w((q + 3) % 4)
    if OPT["diag"]:
        for i in range(1, 17):
            step(i); issue(i)
    else:
        a("s_mov_b32 s50, 0")
        a.label("P1L_loop")
        for i in (1, 2, 3, 4):
            step(i); issue(i)
        a("s_add_u32 s50, s50, 1")
        a("s_cmp_lt_u32 s50, 4")
        a("s_cbranch_scc1 P1L_loop")
    step(17)
    stamp(a, 2, True)
    a("s_mov_b32 m0, %d", L_ST)
    a("s_nop 0")
    a("buffer_load_dwordx4 v%d, %s, 0 offen sc1 lds", vST, sr(S_WS))
    wo_issue(a, (11, 12))
    a("s_waitcnt vmcnt(9)")
    a("s_barrier")
    wo_issue(a, (13, 14))
    a("s_waitcnt vmcnt(9)")
    stamp(a, 3, True)
    a("s_barrier")
    wo_issue(a, (15,))
    a("s_waitcnt vmcnt(10)")
    a("s_barrier")
    if OPT["wthr"]: a("s_waitcnt vmcnt(%d)", max(OPT["wthr"] - 4, 0))
    res_dma(a)
    wo_issue(a, range(OPT["wo1"]), OPT["wthr"] or None)
    if OPT["st3"]: stamp(a, 1, True)
    a("s_waitcnt vmcnt(%d)", 0 if OPT["st3"] == 2 else 2 * OPT["wo1"])
    if OPT["st3"]: stamp(a, 2, True)
    a("s_barrier")

def helper_loader(a):
    a("s_waitcnt lgkmcnt(0)")
    srd(a, S_X, P_X, 2048 * 1280)
    srd(a, S_WQKV, P_WQKV, 640 * 3840)
    a("s_sub_u32 s55, s5, 24")
    a("s_lshl_b32 s55, s55, 2")
    a("s_add_u32 s55, s55, s3")
    if OPT["fa"]:
        srd(a, S_U, P_G, 640 * 3072)
        srd(a, S_WR, P_U, 640 * 3072)
        a("s_lshl_b32 s48, s55, 6")
        a("v_add_u32 v9, s48, v2")
        a("v_mul_u32_u24 v10, 21846, v9")
        a("v_lshrrev_b32 v10, 16, v10")
        a("v_mul_u32_u24 v11, 3, v10")
        a("v_sub_u32 v9, v9, v11")
        a("v_and_b32 v11, 3, v10")
        a("v_lshrrev_b32 v10, 2, v10")
        a("v_sub_u32 v10, 159, v10")
        a("v_mul_u32_u24 v11, 160, v11")
        a("v_add_u32 v10, v10, v11")
        a("v_mul_u32_u24 v10, 3072, v10")
        a("v_lshl_add_u32 v10, v9, 7, v10")
        a("s_mul_i32 s48, s4, 384")
        a("buffer_load_dword v%d, v10, %s, s48 offen", DUMPL, sr(S_U))
        a("s_waitcnt vmcnt(0)")
        a("buffer_load_dword v%d, v10, %s, s48 offen", DUMPL, sr(S_WR))
    pf_setup(a, 55, "h")
    a("s_mov_b32 s56, %d", OPT["S0"])
    a.label("HL_loop")
    if OPT["thr"]: a("s_waitcnt vmcnt(%d)", OPT["thr"] - 1)
    pf_issue(a, 56, "h")
    a("s_add_u32 s56, s56, 1")
    a("s_cmp_lt_u32 s56, 10")
    a("s_cbranch_scc1 HL_loop")
    stamp(a, 1)
    p2_scalars(a)
    l_setup(a)
    wo_issue(a, list(range(11, 16)) + list(range(OPT["wo1"])))
    for u in late_units():
        for h in range(2):
            a("s_add_u32 s48, s%d, %d", 28 + u // 5, ((u % 5) * 16 + h * 80) * 1280)
            a("buffer_load_dwordx4 v[28:31], v%d, %s, s48 offen", vWO, sr(S_WO))
    a("s_cmp_eq_u32 s63, 0")
    a("s_cbranch_scc1 K_end")
    a("s_barrier")
    res_dma(a)
    a("v_mov_b32 v50, %d", L_ST)
    a("ds_read_b32 v50, v50")
    a("s_waitcnt vmcnt(0) lgkmcnt(0)")
    a("v_readfirstlane_b32 s%d, v50", TAG)
    a("s_barrier")

ACC = 16; WF = 112; XF = 144; VA = 192
BB, BP, B0, ONES, MB = 200, 204, 208, 212, 216
aVW, aV0, aV1, aOS, aOL, aO1 = 218, 219, 220, 221, 222, 223
aVW2 = 198; aOL2 = 199; aOS2 = 230
aS0 = 224; STT = 232; SEL0 = 244; SEL1 = 248
pT, pOUT = 1, 7
L2_X = 65536
def acc(m, T): return ACC + (m * 4 + T) * 4

pW0, pW1, pO = 10, 11, 4
def p2_waddr(a, t, full=True):
  if full:
    a("v_and_b32 v%d, 1, v3", t)
    a("v_lshl_add_u32 v%d, v%d, 2, v4", t, t)
    a("v_lshl_add_u32 v%d, v%d, 2, v5", t, t)
    a("s_lshl_b32 s51, s%d, 3", sNP)
    a("v_add_u32 v%d, s51, v%d", pW0, t)
    a("v_add_u32 v%d, 4, v%d", pW1, pW0)
    a("v_and_b32 v%d, 31, v%d", pW0, pW0)
    a("v_and_b32 v%d, 31, v%d", pW1, pW1)
    a("v_lshl_add_u32 v%d, v3, 3, v4", t)
    a("v_lshlrev_b32 v%d, 8, v%d", t, t)
    a("v_lshl_add_u32 v%d, v%d, 3, v%d", pW0, pW0, t)
    a("v_lshl_add_u32 v%d, v%d, 3, v%d", pW1, pW1, t)
  if True:
    a("v_add_u32 v%d, s%d, v6", pT, sT0)
    a("v_and_b32 v%d, 1, v3", t)
    a("v_lshlrev_b32 v%d, 5, v%d", t, t)
    a("v_lshrrev_b32 v%d, 1, v3", t + 1)
    a("v_lshl_add_u32 v%d, v%d, 4, v%d", t, t + 1, t)
    a("v_add_u32 v%d, s%d, v%d", t, sCOL, t)
    a("v_mov_b32 v%d, 0x%x", t + 3, OOB)
    a("s_movk_i32 s51, 1280")
    for m in range(3):
        a("v_add_u32 v%d, %d, v%d", t + 1, 16 * m, pT)
        a("v_cmp_gt_u32 vcc, 2048, v%d", t + 1)
        a("v_lshrrev_b32 v%d, 10, v%d", t + 2, t + 1)
        a("v_and_b32 v%d, 1023, v%d", t + 1, t + 1)
        a("v_lshl_add_u32 v%d, v%d, 1, v%d", t + 1, t + 1, t + 2)
        a("v_mad_u32_u24 v%d, v%d, s51, v%d", t + 1, t + 1, t)
        a("v_cndmask_b32 v%d, v%d, v%d, vcc", pOUT + m, t + 3, t + 1)
  if full:
    a("v_lshrrev_b32 v%d, 1, v3", t)
    a("v_mul_u32_u24 v%d, 2560, v%d", t, t)
    a("v_mul_u32_u24 v%d, 160, v6", t + 1)
    a("v_add_u32 v%d, v%d, v%d", t, t, t + 1)
    a("v_and_b32 v%d, 1, v3", t + 1)
    a("v_lshl_add_u32 v%d, v%d, 4, v%d", pO, t + 1, t)

def p1_setup(a):
    t = 16
    a("s_sub_u32 s49, s3, 4")
    for i in range(4): a("v_mov_b32 v%d, 0x3f803f80", ONES + i)
    a("s_cmp_ge_u32 s49, 2")
    a("s_cbranch_scc1 P1C_noones")
    a("s_mul_i32 s48, s49, 12288")
    a("s_add_u32 s48, s48, %d", L_X)
    a("v_lshl_add_u32 v16, v2, 4, s48")
    a("s_mov_b64 exec, 0xff")
    a("ds_write_b128 v16, %s", vr(ONES, 4))
    a("s_mov_b64 exec, -1")
    a.label("P1C_noones")
    a("v_and_b32 v20, 1, v3")
    a("v_lshl_add_u32 v20, v20, 2, v4")
    a("v_lshlrev_b32 v20, 2, v20")
    a("v_lshl_add_u32 v21, v3, 3, v4")
    a("v_lshlrev_b32 v21, 9, v21")
    a("s_mul_i32 s48, s49, 5")
    a("v_add_u32 v20, s48, v20")
    a("v_mov_b32 v22, v5")
    a("v_add_u32 v23, 22, v5")
    a("v_add_u32 v24, 44, v5")
    a("v_cmp_eq_u32 vcc, 0, v5")
    a("v_cndmask_b32 v24, v24, 4, vcc")
    a("v_lshlrev_b32 v25, 2, v5")
    a("v_add_u32 v25, 40, v25")
    a("v_cndmask_b32 v25, v25, 26, vcc")
    a("s_and_b32 s57, s49, 1")
    a("s_sub_u32 s57, 21, s57")
    a("s_sub_u32 s57, s57, s48")
    a("v_mov_b32 v26, s57")
    a("v_cmp_eq_u32 vcc, 3, v5")
    a("v_cndmask_b32 v25, v25, v26, vcc")
    for T in range(4):
        a("v_add_u32 v26, v%d, v20", 22 + T)
        a("v_and_b32 v26, 63, v26")
        a("v_lshl_add_u32 v%d, v26, 3, v21", VA + T)
    a("v_lshrrev_b32 v20, 1, v6")
    a("v_xor_b32 v20, v20, v3")
    a("v_lshlrev_b32 v20, 4, v20")
    a("v_lshl_add_u32 v20, v6, 7, v20")
    a("v_add_u32 v%d, %d, v20", VA + 4, L_X)
    a("v_xor_b32 v%d, 64, v%d", VA + 5, VA + 4)
    a("s_waitcnt lgkmcnt(0)")
    epoch_load(a)
    srd(a, S_X, P_X, 2048 * 1280)
    srd(a, S_WQKV, P_WQKV, 640 * 3840)
    srd(a, S_WS, P_WS, WS_BYTES)
    srd(a, S_OUT, P_OUT, 2048 * 1280)
    t = 20
    a("v_lshlrev_b32 v%d, 2, v3", t)
    a("v_sub_u32 v%d, v6, v%d", t, t)
    a("v_mov_b32 v%d, 0x%x", t + 1, NEG)
    a("s_cmp_eq_u32 s46, 0")
    a("s_cselect_b32 s54, 0, -1")
    a("v_mov_b32 v%d, 0xffff", t + 2)
    a("v_mov_b32 v%d, s7", t + 3)
    for r in range(4):
        a("v_subrev_u32 v%d, %d, v%d", t + 4, r, t)
        a("v_cmp_gt_u32 vcc, 8, v%d", t + 4)
        a("v_cndmask_b32 v%d, v%d, 0, vcc", BB + r, t + 1)
        if r % 2 == 0: a("v_cndmask_b32 v%d, 0, v%d, vcc", MB + r // 2, t + 2)
        else:
            a("v_cndmask_b32 v%d, 0, v%d, vcc", t + 5, t + 3)
            a("v_or_b32 v%d, v%d, v%d", MB + r // 2, MB + r // 2, t + 5)
        a("s_and_b32 vcc_lo, vcc_lo, s54")
        a("v_cndmask_b32 v%d, v%d, 0, vcc", B0 + r, t + 1)
        a("v_cmp_gt_i32 vcc, -8, v%d", t + 4)
        a("v_cndmask_b32 v%d, v%d, 0, vcc", BP + r, t + 1)
    a("s_sub_u32 s57, s3, 4")
    if OPT["S0"] > 1:
        a("s_cmp_ge_u32 s5, 20")
        a("s_cbranch_scc1 P1_wow")
        a("s_cmp_ge_u32 s57, %d", OPT["S0"] - 1)
        a("s_cbranch_scc1 P1_nopf")
        pf_setup(a, 5, "g")
        a("s_add_u32 s55, s57, 1")
        pf_issue(a, 55, "g")
        a("s_branch P1_nopf")
        a.label("P1_wow")
        if OPT["wow"]:
            srd(a, S_WO, P_WO, 640 * 1280)
            a("s_sub_u32 s55, s5, 20")
            a("s_lshl_b32 s55, s55, 2")
            a("s_add_u32 s55, s55, s57")
            a("s_lshl_b32 s55, s55, 3")
            a("s_add_u32 s55, s55, s4")
            a("s_lshl_b32 s55, s55, 13")
            a("v_lshlrev_b32 v8, 7, v2")
            a("buffer_load_dword v%d, v8, %s, s55 offen", DUMP, sr(S_WO))
        a.label("P1_nopf")
    a("s_mul_i32 s55, s57, 4608")
    a("s_add_u32 s55, s55, %d", L_VT)
    a("v_lshlrev_b32 v%d, 3, v4", t)
    a("v_add_u32 v%d, 4, v%d", t, t)
    a("v_cmp_eq_u32 vcc, 0, v4")
    a("v_cndmask_b32 v%d, v%d, 8, vcc", t, t)
    a("v_add_u32 v%d, v%d, v5", t, t)
    a("v_add_u32 v%d, 16, v5", t + 1)
    a("v_cndmask_b32 v%d, 63, v%d, vcc", t + 1, t + 1)
    a("v_and_b32 v%d, 1, v5", t + 2)
    a("v_lshlrev_b32 v%d, 4, v%d", t + 2, t + 2)
    a("v_mov_b32 v%d, 0x3f80", t + 3)
    a("v_lshlrev_b32 v%d, v%d, v%d", t + 2, t + 2, t + 3)
    for k, SEL in enumerate((SEL0, SEL1)):
        a("v_lshrrev_b32 v%d, 1, v%d", t + k, t + k)
        for p in range(4):
            a("v_lshl_add_u32 v%d, v3, 2, %d", t + 3, p)
            a("v_cmp_eq_u32 vcc, v%d, v%d", t + 3, t + k)
            a("v_cndmask_b32 v%d, 0, v%d, vcc", SEL + p, t + 2)
    a("v_cmp_eq_u32 vcc, 0, v3")
    a("v_mul_u32_u24 v%d, 48, v6", t)
    a("v_add_u32 v%d, s55, v%d", t, t)
    a("v_lshl_add_u32 v%d, v3, 3, v%d", aOS, t)
    a("v_add_u32 v%d, 40, v%d", aOS2, t)
    a("v_add_u32 v%d, 32, v%d", t, t)
    a("v_cndmask_b32 v%d, v%d, v%d, vcc", aOS2, aOS2, t)
    a("s_cmp_eq_u32 s46, 0")
    a("s_cselect_b32 s51, 8, 0")
    a("s_sub_u32 s52, 1031, s46")
    a("v_mov_b32 v%d, s51", t)
    for m in range(6):
        a("v_add_u32 v%d, %d, v6", t + 1, 16 * m)
        a("v_med3_i32 v%d, v%d, v%d, s52", t + 1, t + 1, t)
        a("v_lshlrev_b32 v%d, 3, v%d", aS0 + m, t + 1)
    for m in range(6): a("v_add_u32 v%d, %d, v%d", aS0 + m, L_ST, aS0 + m)
    a("v_subrev_u32 v%d, 256, v0", t)
    a("v_min_u32 v%d, 239, v%d", t, t)
    a("v_lshlrev_b32 v%d, 4, v%d", aO1, t)
    a("v_mul_u32_u24 v%d, 205, v%d", t + 1, t)
    a("v_lshrrev_b32 v%d, 11, v%d", t + 1, t + 1)
    a("v_mul_u32_u24 v%d, 10, v%d", t + 2, t + 1)
    a("v_sub_u32 v%d, v%d, v%d", t, t, t + 2)
    a("v_lshlrev_b32 v%d, 1, v%d", t, t)
    a("v_mul_u32_u24 v%d, 48, v%d", t + 1, t + 1)
    a("v_add_u32 v%d, %d, v%d", t + 1, L_VT + 384, t + 1)
    for k, dst in enumerate((aOL, aOL2)):
        if k: a("v_add_u32 v%d, 1, v%d", t, t)
        a("v_mul_u32_u24 v%d, 52, v%d", t + 2, t)
        a("v_lshrrev_b32 v%d, 8, v%d", t + 2, t + 2)
        a("v_mul_u32_u24 v%d, %d, v%d", t + 2, 4608 - 40, t + 2)
        a("v_lshl_add_u32 v%d, v%d, 3, v%d", dst, t, t + 2)
        a("v_add_u32 v%d, v%d, v%d", dst, dst, t + 1)
    a("s_lshl_b32 s56, s45, 10")
    a("s_add_u32 s56, s56, s46")
    a("s_mul_i32 s56, s56, 160")
    a("s_mul_i32 s51, s44, %d", 2048 * 160)
    a("s_add_u32 s56, s56, s51")
    a("s_add_u32 s56, s56, 0x%x", O_OFF)
    a("s_add_u32 s%d, s%d, s56", S_O, P_WS)
    a("s_addc_u32 s%d, s%d, 0", S_O + 1, P_WS + 1)
    a("s_and_b32 s%d, s%d, 0xffff", S_O + 1, S_O + 1)
    a("s_sub_u32 s51, 1024, s46")
    a("s_min_u32 s51, s51, 88")
    a("s_mul_i32 s%d, s51, 160", S_O + 2)
    a("s_mov_b32 s%d, 0x20000", S_O + 3)
    a("s_lshl_b32 s51, s47, 3")
    a("s_add_u32 s44, s44, s51")
    a("s_lshl_b32 s44, s44, 5")
    a("s_add_u32 s44, s44, s57")
    a("s_lshl_b32 s44, s44, 2")
    a("s_add_u32 s44, s44, 0x%x", FLAG_OFF)
    p2_scalars(a)
    p2_waddr(a, t)
    a("s_mov_b32 s58, 0x%x", CEXP)
    tag_ready(a)

def interleave(a, M, V, start, per):
    V = list(V)
    for k, m in enumerate(M):
        a(m)
        if k >= start:
            for x in V[:per]: a(x)
            V = V[per:]
    return V
def lines(f):
    s = Asm(); f(s)
    return [l.strip() for l in s.lines if l.strip()]

def p1_compute(a):
    stamp(a, 1)
    def rd_list(i):
        q, b = i % 4, i % 2
        L = []
        for T in range(4):
            for h in range(2):
                L.append("ds_read_b64_tr_b16 %s, v%d offset:%d" % (vr(WF + b * 16 + T * 4 + h * 2, 2), VA + T, L_W + q * 16384 + h * 2048))
        for m in range(6):
            L.append("ds_read_b128 %s, v%d offset:%d" % (vr(XF + b * 24 + m * 4, 4), VA + 4 + b, (q // 2) * 12288 + m * 2048))
        return L
    def mf_list(i, first=False):
        b = i % 2
        if OPT["nomf"]: return ["s_nop 0"] * 24
        return ["v_mfma_f32_16x16x32_bf16 %s, %s, %s, %s" % (vr(acc(m, T), 4), vr(WF + b * 16 + T * 4, 4), vr(XF + b * 24 + m * 4, 4), "0" if first else vr(acc(m, T), 4))
                for m in range(6) for T in range(4)]
    def step(i, first=False, extra=()):
        a("s_barrier")
        interleave(a, mf_list(i - 1, first), rd_list(i) + list(extra), 0, 1)
        a("s_waitcnt lgkmcnt(0)")
    a("s_barrier")
    for r in rd_list(0): a(r)
    a("s_waitcnt lgkmcnt(0)")
    step(1, True)
    a("s_mov_b32 s48, 0")
    a("s_branch P1C_in")
    a.label("P1C_loop")
    step(1)
    a.label("P1C_in")
    step(2); step(3)
    a("s_add_u32 s48, s48, 1")
    a("s_cmp_lt_u32 s48, 4")
    step(4)
    a("s_cbranch_scc1 P1C_loop")
    step(17); step(18); step(19)
    a("s_barrier")
    a("s_setprio 3")
    stamp(a, 2)
    M = mf_list(19)
    CS, QF = WF, XF
    KV = lambda m: (XF + 24 + 6 * m) if m < 4 else (WF + 16 + 6 * (m - 4))
    interleave(a, M[:8], ["ds_read_b64 %s, v%d" % (vr(STT + 2 * m, 2), aS0 + m) for m in range(6)], 0, 2)
    M = M[8:]
    a("s_waitcnt vmcnt(0) lgkmcnt(0)")
    poll_begin(a, "P1C_poll")
    for m in range(6): a("v_xor_b32 v%d, s%d, v%d", CS + m, TAG, STT + 2 * m + 1)
    a("v_or3_b32 v%d, v%d, v%d, v%d", CS, CS, CS + 1, CS + 2)
    a("v_or3_b32 v%d, v%d, v%d, v%d", CS + 3, CS + 3, CS + 4, CS + 5)
    a("v_or_b32 v%d, v%d, v%d", CS, CS, CS + 3)
    a("v_cmp_ne_u32 vcc, 0, v%d", CS)
    a("s_cbranch_vccnz P1C_slow")
    a.label("P1C_statok")
    a("s_mov_b64 vcc, 0xffff")
    def statf(s):
        for m in range(6):
            st = STT + 2 * m
            s("v_and_b32 v%d, s7, v%d", st + 1, st)
            s("v_rcp_f32 v%d, v%d", st + 1, st + 1)
            s("v_lshlrev_b32 v%d, 16, v%d", st, st)
    def csf(s):
        for i in range(16):
            s("v_mov_b32_dpp v%d, v%d row_newbcast:0 row_mask:0xf bank_mask:0xf", CS + i, acc(0, 0) + i)
    def scale(s, m):
        st = STT + 2 * m
        for T in range(4):
            for h in range(2):
                r = acc(m, T) + 2 * h
                s("v_pk_fma_f32 %s, %s, %s, %s op_sel_hi:[0,1,1] neg_lo:[1,0,0] neg_hi:[1,0,0]", vr(r, 2), vr(st, 2), vr(CS + T * 4 + 2 * h, 2), vr(r, 2))
        for T in range(4):
            for h in range(2):
                r = acc(m, T) + 2 * h
                s("v_pk_mul_f32 %s, %s, %s op_sel:[0,1]", vr(r, 2), vr(r, 2), vr(st, 2))
        dst = {0: QF + 4 * m, 1: KV(m), 2: KV(m) + 4, 3: KV(m) + 2}
        for T in (2, 3, 1, 0):
            for h in range(2):
                s("v_cvt_pk_bf16_f32 v%d, v%d, v%d", dst[T] + h, acc(m, T) + 2 * h, acc(m, T) + 2 * h + 1)
        for h in range(2):
            s("v_cndmask_b32 v%d, 0, v%d, vcc", QF + 4 * m + 2 + h, KV(m) + 4 + h)
    def pk(m): return lines(lambda s: scale(s, m))[:16]
    def cv(m): return lines(lambda s: scale(s, m))[16:]
    V = lines(csf) + lines(statf)
    V = interleave(a, M, V, 0, 2)
    for x in V: a(x)
    if not OPT['st2']: stamp(a, 3)
    SB = lambda m: acc(m, 0)
    SP = lambda m: acc(m, 1)
    MX = lambda m: acc(m, 2)
    O0 = lambda m: acc(m, 0)
    O1 = lambda m: acc(m, 3)
    OS = lambda m: acc(m, 2)
    LQ = []
    cnt = [0]
    def e(x, gap=OPT["gap"]):
        a(x)
        cnt[0] += 2 if x.startswith(("v_exp", "v_rcp", "v_mfma")) else 1
        if LQ and cnt[0] >= gap:
            a(LQ.pop(0)); cnt[0] = 0
    def flush():
        while LQ: a(LQ.pop(0))
    def smf(m):
        return ["v_mfma_f32_16x16x32_bf16 %s, %s, %s, %s" % (vr(SB(m), 4), vr(KV(m), 4), vr(QF + 4 * m, 4), vr(B0 if m == 0 else BB, 4)),
                "v_mfma_f32_16x16x32_bf16 %s, %s, %s, %s" % (vr(SP(m), 4), vr(KV(max(m - 1, 0)), 4), vr(QF + 4 * m, 4), vr(BP, 4)),
                "v_mfma_f32_16x16x32_bf16 %s, %s, %s, 0" % (vr(acc(m, 2), 4), vr(KV(m) + 2, 4), vr(SEL0, 4)),
                "v_mfma_f32_16x16x32_bf16 %s, %s, %s, 0" % (vr(acc(m, 3), 4), vr(KV(m) + 2, 4), vr(SEL1, 4))]
    def vcvt(m):
        for T, base in ((2, VA0), (3, VA1)):
            for h in range(2):
                e("v_cvt_pk_bf16_f32 v%d, v%d, v%d" % (base + 2 * (m + 1) + h, acc(m, T) + 2 * h, acc(m, T) + 2 * h + 1))
    def merge(m):
        for r in range(4): e("v_max_f32 v%d, v%d, v%d" % (SB(m) + r, SB(m) + r, SP(m) + r))
        e("v_max3_f32 v%d, v%d, v%d, v%d" % (MX(m), SB(m), SB(m) + 1, SB(m) + 2))
        e("v_max_f32 v%d, v%d, v%d" % (MX(m), MX(m), SB(m) + 3))
    for m in range(6):
        for x in pk(m): e(x)
        C = cv(m)
        F = smf(m - 1) if m else []
        for k, x in enumerate(C):
            if F and k in (0, 3, 6, 9): e(F.pop(0))
            e(x)
    for x in smf(5): e(x)
    VA0, VA1 = XF, XF + 14
    for m in range(5):
        vcvt(m); merge(m)
    for h in range(2):
        e("v_mov_b32 v%d, v%d" % (VA0 + h, VA0 + 2 + h))
        e("v_mov_b32 v%d, v%d" % (VA1 + h, VA1 + 2 + h))
    vcvt(5)
    S32, S16 = "v_permlane32_swap_b32", "v_permlane16_swap_b32"
    e("%s v%d, v%d" % (S32, MX(0), MX(1)))
    e("%s v%d, v%d" % (S32, MX(2), MX(3)))
    e("v_max_f32 v%d, v%d, v%d" % (MX(0), MX(0), MX(1)))
    e("v_max_f32 v%d, v%d, v%d" % (MX(2), MX(2), MX(3)))
    e("%s v%d, v%d" % (S16, MX(0), MX(2)))
    e("v_max_f32 v%d, v%d, v%d" % (MX(0), MX(0), MX(2)))
    e("v_mul_f32 v%d, s58, v%d" % (MX(0), MX(0)))
    e("v_mov_b32 v%d, v%d" % (MX(2), MX(0)))
    merge(5)
    e("%s v%d, v%d" % (S16, MX(0), MX(2)))
    e("%s v%d, v%d" % (S32, MX(4), MX(5)))
    e("v_mov_b32 v%d, v%d" % (MX(1), MX(0)))
    e("v_mov_b32 v%d, v%d" % (MX(3), MX(2)))
    e("v_max_f32 v%d, v%d, v%d" % (MX(5), MX(4), MX(5)))
    e("v_mov_b32 v%d, v%d" % (MX(4), MX(5)))
    e("%s v%d, v%d" % (S32, MX(0), MX(1)))
    e("%s v%d, v%d" % (S32, MX(2), MX(3)))
    e("%s v%d, v%d" % (S16, MX(4), MX(5)))
    def sub(m):
        for h in range(2):
            e("v_pk_fma_f32 %s, %s, s[58:59], %s op_sel_hi:[1,0,0] neg_lo:[0,0,1] neg_hi:[0,0,1]" % (vr(SB(m) + 2 * h, 2), vr(SB(m) + 2 * h, 2), vr(MX(m), 2)))
    sub(0)
    e("v_max_f32 v%d, v%d, v%d" % (MX(4), MX(4), MX(5)))
    e("v_mul_f32 v%d, s58, v%d" % (MX(4), MX(4)))
    sub(1)
    e("v_mov_b32 v%d, v%d" % (MX(5), MX(4)))
    sub(2)
    e("%s v%d, v%d" % (S32, MX(4), MX(5)))
    sub(3); sub(4); sub(5)
    if not OPT['st2']: stamp(a, 4)
    def post(m):
        L = ["v_rcp_f32 v%d, v%d" % (OS(m), OS(m))]
        for b in (O0(m), O0(m) + 2, O1(m), O1(m) + 2):
            L.append("v_pk_mul_f32 %s, %s, %s op_sel_hi:[1,0]" % (vr(b, 2), vr(b, 2), vr(OS(m), 2)))
        for b in (O0(m), O1(m)):
            L.append("v_cvt_pk_bf16_f32 v%d, v%d, v%d" % (b, b, b + 1))
            L.append("v_cvt_pk_bf16_f32 v%d, v%d, v%d" % (b + 1, b + 2, b + 3))
        return L
    def ow(m):
        return ["ds_write_b64 v%d, %s offset:%d" % (aOS, vr(O0(m), 2), m * 768),
                "ds_write_b64 v%d, %s offset:%d" % (aOS2, vr(O1(m), 2), m * 768)]
    def pv(m):
        return ["v_mfma_f32_16x16x32_bf16 %s, %s, %s, 0" % (vr(OS(m), 4), vr(ONES, 4), vr(SP(m), 4)),
                "v_mfma_f32_16x16x32_bf16 %s, %s, %s, 0" % (vr(O0(m), 4), vr(VA0 + 2 * m, 4), vr(SP(m), 4)),
                "v_mfma_f32_16x16x32_bf16 %s, %s, %s, 0" % (vr(O1(m), 4), vr(VA1 + 2 * m, 4), vr(SP(m), 4))]
    order = (0, 1, 2, 3, 4, 5)
    pend = []; issued = []
    ready = False
    for n, m in enumerate(order):
        ready = True
        F = []
        if ready:
            while pend and len(F) < 6:
                issued.append(pend[0]); F += pv(pend.pop(0))
        body = []
        for r in range(4): body.append("v_exp_f32 v%d, v%d" % (SB(m) + r, SB(m) + r))
        for h in range(2): body.append("v_cvt_pk_bf16_f32 v%d, v%d, v%d" % (SP(m) + h, SB(m) + 2 * h, SB(m) + 2 * h + 1))
        for h in range(2): body.append("v_and_b32 v%d, v%d, v%d" % (SP(m) + 2 + h, SP(m) + h, MB + h))
        for h in range(2): body.append("v_xor_b32 v%d, v%d, v%d" % (SP(m) + h, SP(m) + h, SP(m) + 2 + h))
        slots = (0, 1, 2, 3, 4, 6)
        for k, x in enumerate(body):
            if F and k in slots: e(F.pop(0))
            e(x)
        pend.append(m)
    F = [x for m in pend for x in pv(m)]
    for m in issued + pend:
        for k, x in enumerate(post(m)):
            if F and m in pend:
                while F: e(F.pop(0))
            if F and k >= 5 and k % 1 == 0: e(F.pop(0))
            e(x, 4)
        LQ.extend(ow(m))
    flush()
    a("s_waitcnt lgkmcnt(0)")
    if OPT["st3"]: stamp(a, 1)
    a("s_barrier")
    if not OPT['st2']: stamp(a, 5)
    for n in range(4):
        a("ds_read_b64 %s, v%d offset:%d", vr(16 + 4 * n, 2), aOL, n * 1152)
        a("ds_read_b64 %s, v%d offset:%d", vr(18 + 4 * n, 2), aOL2, n * 1152)
    for n in range(4):
        a("s_movk_i32 s51, %d", n * 3840)
        a("s_waitcnt lgkmcnt(%d)", 6 - 2 * n)
        if OPT["hint"]:
            a("v_min_u32 v%d, -2, v%d", 16 + 4 * n, 16 + 4 * n)
            a("v_min_u32 v%d, -2, v%d", 18 + 4 * n, 18 + 4 * n)
        a("buffer_store_dwordx4 %s, v%d, %s, s51 offen sc1", vr(16 + 4 * n, 4), aO1, sr(S_O))

def p1_slow(a):
    a.label("P1C_slow")
    a("s_lshl_b32 s51, s45, 10")
    a("s_add_u32 s51, s51, s46")
    a("s_lshl_b32 s51, s51, 3")
    a("s_sub_u32 s51, s51, %d", L_ST + 64)
    for m in range(6):
        a("v_add_u32 v%d, s51, v%d", WF + 8, aS0 + m)
        a("buffer_load_dwordx2 %s, v%d, %s, 0 offen sc1", vr(STT + 2 * m, 2), WF + 8, sr(S_WS))
    a("s_waitcnt vmcnt(0)")
    a("s_sub_u32 s59, s59, 1")
    a("s_cmp_lg_u32 s59, 0")
    a("s_cbranch_scc1 P1C_poll")
    a("s_branch P1C_statok")

WR = 64; AC2 = 16; OF = 40
L2_X = 65536
XR = lambda m: 224 + 8 * m
XN = lambda m: 228 + 8 * m
RS, RT, UP, RN = 32, 44, 68, 56
def x_issue(a, ms):
    for m in ms:
        a("buffer_load_dwordx4 %s, v%d, %s, 0 offen", vr(XR(m), 4), pOUT + m, sr(S_X))
def stat_issue(a, ms):
    for m in ms:
        a("v_add_u32 v24, %d, v%d", 16 * m, pT)
        a("v_min_u32 v24, 2047, v24")
        a("v_lshlrev_b32 v24, 3, v24")
        a("buffer_load_dwordx2 %s, v24, %s, 0 offen sc1", vr(RS + 2 * m, 2), sr(S_WS))
def xn_compute(a, ms, uid):
    poll_begin(a, "XN_p%s" % uid)
    a("v_mov_b32 v42, 0")
    for m in ms:
        a("v_xor_b32 v43, s%d, v%d", TAG, RS + 2 * m + 1)
        a("v_or_b32 v42, v42, v43")
    a("v_cmp_ne_u32 vcc, 0, v42")
    a("s_cbranch_vccz XN_ok%s", uid)
    a("s_sleep 2")
    stat_issue(a, ms)
    a("s_waitcnt vmcnt(0)")
    a("s_sub_u32 s59, s59, 1")
    a("s_cmp_lg_u32 s59, 0")
    a("s_cbranch_scc1 XN_p%s", uid)
    a.label("XN_ok%s" % uid)
    for m in ms:
        st = RS + 2 * m
        a("v_and_b32 v%d, s7, v%d", st + 1, st)
        a("v_rcp_f32 v%d, v%d", st + 1, st + 1)
        a("v_lshlrev_b32 v%d, 16, v%d", st, st)
    for m in ms:
        st = RS + 2 * m
        unp(a, RN, XR(m))
        for q in range(4):
            a("v_pk_add_f32 %s, %s, %s op_sel_hi:[1,0] neg_lo:[0,1] neg_hi:[0,1]", vr(RN + 2 * q, 2), vr(RN + 2 * q, 2), vr(st, 2))
        for q in range(4): a("v_cvt_pk_bf16_f32 v%d, v%d, v%d", XN(m) + q, RN + 2 * q, RN + 2 * q + 1)
        unp(a, RN, XN(m))
        for q in range(4):
            a("v_pk_mul_f32 %s, %s, %s op_sel:[0,1]", vr(RN + 2 * q, 2), vr(RN + 2 * q, 2), vr(st, 2))
        for q in range(4): a("v_cvt_pk_bf16_f32 v%d, v%d, v%d", XN(m) + q, RN + 2 * q, RN + 2 * q + 1)
def unp(s, dst, src):
    for r in range(4):
        s("v_lshlrev_b32 v%d, 16, v%d", dst + 2 * r, src + r)
        s("v_and_b32 v%d, s7, v%d", dst + 2 * r + 1, src + r)
def top_check(a):
    a("v_readfirstlane_b32 s56, v%d", RT)
    a("v_readfirstlane_b32 s57, v%d", RT + 1)
    a("s_and_b32 s50, s56, 0xffff")
    a("s_lshr_b32 s51, s56, 16")
    a("s_sub_u32 s50, s50, s%d", sT0)
    a("s_sub_u32 s51, s51, s%d", sT0)
    a("s_min_u32 s50, s50, s51")
    a("s_cmp_lg_u32 s57, s%d", TAG)
    a("s_cselect_b32 s50, 0, s50")
    a("s_cmp_lt_u32 s50, 48")
    a("s_cselect_b32 s55, 1, 0")
    a("v_mul_u32_u24 v53, %d, v3", 6 * 10240)
    a("v_lshl_add_u32 v53, v6, 4, v53")
    a("v_and_b32 v54, 1, v3")
    a("v_lshlrev_b32 v54, 5, v54")
    a("v_lshrrev_b32 v55, 1, v3")
    a("v_lshl_add_u32 v54, v55, 4, v54")
    a("v_not_b32 v169, s%d", TAG)
    a("v_not_b32 v193, s%d", TAG)
YR = (168, 192)
XNU = lambda m: (104, 120, 216)[m]
def y_issue(a, k, uid=""):
    if k == 0: a("s_and_b32 s54, s56, 0xffff")
    else: a("s_lshr_b32 s54, s56, 16")
    a("s_sub_u32 s52, s54, s%d", sT0)
    a("s_cmp_ge_u32 s52, 48")
    a("s_cbranch_scc1 YI_%s%d", uid, k)
    a("s_lshl_b32 s51, s%d, 2", sCOL)
    a("s_add_u32 s51, s51, 0x%x", Y_OFF + k * 5120)
    for n in range(6):
        a("buffer_load_dwordx4 %s, v53, %s, s51 offen sc1", vr(YR[k] + 4 * n, 4), sr(S_WS))
        if n < 5: a("s_add_u32 s51, s51, 10240")
    a.label("YI_%s%d" % (uid, k))
def upd_apply(a):
    a.label("UP_go")
    poll_begin(a, "UP_p")
    a("v_readfirstlane_b32 s56, v%d", RT)
    a("v_readfirstlane_b32 s57, v%d", RT + 2)
    a("v_min_u32 v42, v%d, v%d", RT + 1, RT + 3)
    a("v_max_u32 v43, v%d, v%d", RT + 1, RT + 3)
    for k in range(2):
        if k == 0: a("s_and_b32 s54, s56, 0xffff")
        else: a("s_lshr_b32 s54, s56, 16")
        a("s_sub_u32 s52, s54, s%d", sT0)
        a("s_cmp_ge_u32 s52, 48")
        a("s_cbranch_scc1 UP_c%d", k)
        for n in range(6):
            a("v_min3_u32 v42, v42, v%d, v%d", YR[k] + 4 * n + 1, YR[k] + 4 * n + 3)
            a("v_max3_u32 v43, v43, v%d, v%d", YR[k] + 4 * n + 1, YR[k] + 4 * n + 3)
        a.label("UP_c%d" % k)
    a("v_xor_b32 v42, s%d, v42", TAG)
    a("v_xor_b32 v43, s%d, v43", TAG)
    a("v_or_b32 v42, v42, v43")
    a("v_cmp_ne_u32 vcc, 0, v42")
    a("s_cbranch_vccz UP_ok")
    a("s_cmp_eq_u32 s82, 0")
    a("s_cbranch_scc1 UP_done0")
    a("s_mov_b32 s6, 0x%x", TOP_OFF)
    a("buffer_load_dwordx4 %s, off, %s, s6 sc1", vr(RT, 4), sr(S_WS))
    y_issue(a, 0, "r"); y_issue(a, 1, "r")
    a("s_waitcnt vmcnt(0)")
    a("s_sub_u32 s59, s59, 1")
    a("s_cmp_lg_u32 s59, 0")
    a("s_cbranch_scc1 UP_p")
    a.label("UP_ok")
    a("s_mov_b32 s55, 0")
    for k in range(2):
        Y = YR[k]
        skip = "UP_s%d" % k
        if k == 0:
            a("s_and_b32 s54, s56, 0xffff"); a("s_lshl_b32 s53, s57, 16")
        else:
            a("s_lshr_b32 s54, s56, 16"); a("s_and_b32 s53, s57, 0xffff0000")
        a("s_sub_u32 s52, s54, s%d", sT0)
        a("s_cmp_ge_u32 s52, 48")
        a("s_cbranch_scc1 %s", skip)
        a("v_add_f32 v16, v%d, v%d", Y, Y + 4)
        a("v_add_f32 v18, v%d, v%d", Y + 2, Y + 6)
        for n in range(2, 6):
            a("v_add_f32 v16, v16, v%d", Y + 4 * n)
            a("v_add_f32 v18, v18, v%d", Y + 2 + 4 * n)
        for swap in ("v_permlane32_swap_b32", "v_permlane16_swap_b32"):
            a("v_mov_b32 v17, v16"); a("v_mov_b32 v19, v18")
            a("%s v16, v17", swap); a("%s v18, v19", swap)
            a("v_add_f32 v16, v16, v17"); a("v_add_f32 v18, v18, v19")
        a("v_cvt_pk_bf16_f32 v18, v16, v18")
        a("v_lshlrev_b32 v16, 16, v18")
        a("v_and_b32 v18, s7, v18")
        a("v_mul_f32 v16, s53, v16"); a("v_mul_f32 v18, s53, v18")
        a("v_cvt_pk_bf16_f32 v16, v16, v18")
        for r in range(4):
            a("ds_bpermute_b32 v%d, v54, v16 offset:%d", 20 + r, 4 * r)
        a("s_and_b32 s50, s52, 15")
        a("v_cmp_eq_u32 vcc, s50, v6")
        a("s_lshr_b32 s52, s52, 4")
        a("s_waitcnt lgkmcnt(0)")
        for r in range(4): a("v_cndmask_b32 v%d, 0, v%d, vcc", 20 + r, 20 + r)
        unp(a, RN, 20)
        for m in range(3):
            a("s_cmp_lg_u32 s52, %d", m)
            a("s_cbranch_scc1 UP_m%d%d", k, m)
            XU = XNU(m)
            for r in range(4): a("v_pk_add_f32 %s, %s, %s", vr(XU + 2 * r, 2), vr(XU + 2 * r, 2), vr(RN + 2 * r, 2))
            for r in range(4): a("v_cvt_pk_bf16_f32 v%d, v%d, v%d", XN(m) + r, XU + 2 * r, XU + 2 * r + 1)
            unp(a, XU, XN(m))
            a.label("UP_m%d%d" % (k, m))
        a.label(skip)
    a("s_cmp_eq_u32 s82, 0")
    a("s_cbranch_scc1 UP_done0")
    a("s_branch UP_done1")
PK = 12
def final(s, m, A, U):
    for r in range(4): s("v_cvt_pk_bf16_f32 v%d, v%d, v%d", PK + r, A + 2 * r, A + 2 * r + 1)
    s("v_permlane16_swap_b32 v%d, v%d", PK, PK + 2)
    s("v_permlane16_swap_b32 v%d, v%d", PK + 1, PK + 3)
    for k in range(2):
        unp(s, A, PK)
        for r in range(4): s("v_pk_add_f32 %s, %s, %s", vr(A + 2 * r, 2), vr(A + 2 * r, 2), vr(U[k] + 2 * r, 2))
        for r in range(4): s("v_cvt_pk_bf16_f32 v%d, v%d, v%d", PK + r, A + 2 * r, A + 2 * r + 1)
    s("buffer_store_dwordx4 %s, v%d, %s, 0 offen", vr(PK, 4), pOUT + m, sr(S_OUT))

UPC = 192
RT8 = 44
def res_read(a, ms, meta=True):
    a("v_and_b32 v40, 1, v3")
    a("v_lshrrev_b32 v41, 1, v3")
    a("v_lshl_add_u32 v40, v40, 1, v41")
    a("s_lshl_b32 s50, s%d, 2", sNP)
    a("v_add_u32 v40, s50, v40")
    a("v_xor_b32 v40, v40, v6")
    a("v_lshlrev_b32 v40, 4, v40")
    a("v_lshl_add_u32 v40, v6, 8, v40")
    a("v_add_u32 v40, %d, v40", L_XR)
    for m in ms:
        a("ds_read_b128 %s, v40 offset:%d", vr(XR(m), 4), m * 4096)
    if not meta: return
    a("s_sub_u32 s50, 2047, s%d", sT0)
    for m in ms:
        a("v_add_u32 v41, %d, v6", 16 * m)
        a("v_min_u32 v41, s50, v41")
        a("v_lshlrev_b32 v41, 3, v41")
        a("v_add_u32 v41, %d, v41", L_S2)
        a("ds_read_b64 %s, v41", vr(RS + 2 * m, 2))
    a("v_mov_b32 v41, %d", L_TP)
    a("ds_read_b128 %s, v41", vr(RT8, 4))

def p2_compute(a):
    B = 248
    a("v_mov_b32 v12, s%d", TAG)
    if OPT["hint"]:
        a("s_cmp_ge_u32 s5, 24")
        a("s_cbranch_scc1 P2C_nohint")
        a("s_mov_b64 exec, 1")
        a("buffer_store_dword v12, off, %s, s44 sc1", sr(S_WS))
        a("s_mov_b64 exec, -1")
        a.label("P2C_nohint")
    res_read(a, (2,), False)
    a("v_add_u32 v%d, 0x10000, v%d", B, pW0)
    a("v_add_u32 v%d, 0x10000, v%d", B + 1, pW1)
    a("v_add_u32 v%d, 0x20000, v%d", B + 2, pW0)
    a("v_add_u32 v%d, 0x20000, v%d", B + 3, pW1)
    a("s_waitcnt lgkmcnt(0)")
    a("s_barrier")
    def rd(u):
        for e in range(2):
            for h in range(2):
                base = (pW0, pW1, B, B + 1, B + 2, B + 3)[e + 2 * (u // 8)]
                a("ds_read_b64_tr_b16 %s, v%d offset:%d", vr(WR + 8 * u + 4 * e + 2 * h, 2), base, (u % 8) * 8192 + h * 1024)
    stamp(a, 6)
    for u in early_units(): rd(u)
    if not OPT["hint"]:
        a("s_cmp_ge_u32 s5, 24")
        a("s_cbranch_scc1 P2C_noflag")
        a("s_waitcnt vmcnt(0)")
        a("s_mov_b64 exec, 1")
        a("buffer_store_dword v12, off, %s, s44 sc1", sr(S_WS))
        a("s_mov_b64 exec, -1")
        a.label("P2C_noflag")
    a("s_waitcnt lgkmcnt(0)")
    a("s_barrier")
    if OPT["st2"] == 1: stamp(a, 3)
    for u in late_units(): rd(u)
    a("s_lshl_b32 s50, s%d, 12", sNP)
    a("s_add_u32 s50, s50, %d", L2_X)
    a("v_lshl_add_u32 v%d, v2, 4, s50", pW0)
    unp(a, 224, XR(2))
    for aa in range(4):
        a("s_add_u32 s50, s61, %d", aa)
        a("s_and_b32 s50, s50, 3")
        if not OPT["rot"]: a("s_mov_b32 s50, %d", aa)
        a("s_mul_i32 s50, s50, 5120")
        a("v_add_u32 v%d, s50, v%d", B + 4 + aa, pO)
    a("s_waitcnt lgkmcnt(0)")
    def ord_(n):
        m, ks = n // 20, n % 20
        return "ds_read_b128 %s, v%d offset:%d" % (vr(OF + (n % 6) * 4, 4), B + 4 + ks // 5, m * 20480 + (ks % 5) * 32)
    a("s_barrier")
    if OPT["st2"]: stamp(a, 4 if OPT["st2"] == 1 else 2)
    q = []
    def ds(x, tag): a(x); q.append(tag)
    for n in range(4): ds(ord_(n), n)
    XA, XB_ = OPT["xa"], OPT["xb"]
    U = []
    for n0 in range(0, 60, 2):
        if n0 == 16: a("s_barrier")
        if n0 == 16 and OPT["st2"] == 2: stamp(a, 3)
        k = q.index(n0 + 1)
        a("s_waitcnt lgkmcnt(%d)", len(q) - 1 - k)
        del q[:k + 1]
        for n in (n0, n0 + 1):
            m, ks = n // 20, n % 20
            A = AC2 + 8 * m
            for e in range(2):
                d = vr(A + 4 * e, 4)
                a("v_mfma_f32_16x16x32_bf16 %s, %s, %s, %s", d, vr(WR + 8 * ks + 4 * e, 4), vr(OF + (n % 6) * 4, 4), d if ks else "0")
                if n == n0 and n0 + 4 + e < 60: ds(ord_(n0 + 4 + e), n0 + 4 + e)
                if m and ks == 3:
                    ds("ds_write_b128 v%d, %s offset:%d" % (pW0, vr(A - 8 + 4 * e, 4), (m - 1) * 2048 + e * 1024), "x")
                for x in U[:2]: a(x)
                U = U[2:]
        if n0 == XA or n0 == XB_: a("s_barrier")
        if n0 in (XA, XB_) and OPT["st2"] == 2: stamp(a, 4 if n0 == XA else 5)
        if n0 == XB_: ds("ds_read_b128 %s, v%d offset:16384" % (vr(XN(2), 4), pW0), "x")
        if n0 == 56: U = lines(lambda s: unp(s, 232, XN(2)))
    if OPT["st2"]: stamp(a, 5 if OPT["st2"] == 1 else 6)
    final(a, 2, AC2 + 16, (224, 232))

def o_dma(a):
    for m in range(3):
        if m == 2:
            a("s_cmp_eq_u32 s61, 42")
            a("s_cselect_b32 s51, s51, %d", m * 2560)
        else: a("s_movk_i32 s51, %d", m * 2560)
        for i in range(5):
            a("s_add_u32 m0, s49, %d", m * 20480 + i * 1024)
            a("buffer_load_dwordx4 v%d, %s, s51 offen sc1 lds", vO + i, sr(S_WS))
SCN = 148
def scan(a, m):
    if not OPT["hint"]: return
    a("s_mov_b32 s59, %d", OPT["spin"])
    a.label("P2L_scan%d" % m)
    for i in range(5):
        a("ds_read_b128 %s, v%d offset:%d", vr(SCN + 4 * i, 4), vSC, m * 20480 + i * 1024)
    a("s_waitcnt lgkmcnt(0)")
    a("v_max_u32 v52, v%d, v%d", SCN, SCN + 2)
    for i in range(1, 5): a("v_max3_u32 v52, v52, v%d, v%d", SCN + 4 * i, SCN + 4 * i + 2)
    a("v_cmp_eq_u32 vcc, -1, v52")
    a("s_cbranch_vccnz P2L_redo%d", m)
    a.label("P2L_ok%d" % m)

def p2_loader(a):
    FO = 0
    res_read(a, (0, 1, 2))
    a("s_waitcnt vmcnt(0) lgkmcnt(0)")
    a("s_barrier")
    wo_issue(a, late_units())
    top_check(a)
    a("s_cmp_eq_u32 s55, 0")
    a("s_cbranch_scc1 P2L_noy")
    y_issue(a, 0); y_issue(a, 1)
    a.label("P2L_noy")
    a("s_mov_b64 exec, 0xffff")
    a("buffer_load_dword v50, v%d, %s, 0 offen offset:%d sc1", vFL, sr(S_WS), FO)
    a("s_mov_b64 exec, -1")
    xn_compute(a, (0, 1, 2), "l")
    for m in range(2):
        unp(a, 96 + 16 * m, XR(m)); unp(a, 104 + 16 * m, XN(m))
    unp(a, XNU(2), XN(2))
    a("s_waitcnt vmcnt(1)")
    a("s_barrier")
    stamp(a, 4, True)
    a("s_mov_b64 exec, 0xffff")
    a("s_mov_b32 s59, %d", OPT["spin"])
    a("s_branch P2L_chk")
    a.label("P2L_poll")
    a("buffer_load_dword v50, v%d, %s, 0 offen offset:%d sc1", vFL, sr(S_WS), FO)
    a.label("P2L_chk")
    a("s_waitcnt vmcnt(0)")
    a("v_cmp_ne_u32 vcc, s%d, v50", TAG)
    poll_end(a, "P2L_poll", "P2L_go", OPT["fsleep"])
    a("s_mov_b64 exec, -1")
    stamp(a, 5, True)
    o_dma(a)
    a("s_lshl_b32 s50, s%d, 12", sNP)
    a("s_add_u32 s50, s50, %d", L2_X)
    a("v_lshl_add_u32 v50, v2, 4, s50")
    def ywait(n): a("s_waitcnt vmcnt(%d)", n)
    a("s_mov_b32 s82, 0")
    a("s_cmp_eq_u32 s55, 1")
    a("s_cbranch_scc1 UP_go")
    a.label("UP_done0")
    ywait(10)
    scan(a, 0)
    a("s_barrier")
    ywait(5)
    scan(a, 1)
    a("s_barrier")
    stamp(a, 6, True)
    ywait(0)
    a("s_cmp_eq_u32 s55, 0")
    a("s_cbranch_scc1 P2L_noy2")
    a("s_mov_b32 s6, 0x%x", TOP_OFF)
    a("buffer_load_dwordx4 %s, off, %s, s6 sc1", vr(RT, 4), sr(S_WS))
    y_issue(a, 0, "s"); y_issue(a, 1, "s")
    a.label("P2L_noy2")
    scan(a, 2)
    for m in range(2):
        a("s_barrier")
        a("ds_read_b128 v[28:31], v50 offset:%d", m * 2048)
        a("ds_read_b128 v[32:35], v50 offset:%d", m * 2048 + 1024)
        if m == 0:
            a("s_mov_b32 s82, 1")
            a("s_cmp_eq_u32 s55, 1")
            a("s_cbranch_scc0 UP_done1")
            a("s_waitcnt vmcnt(0)")
            a("s_branch UP_go")
            a.label("UP_done1")
            a("ds_write_b128 v50, %s offset:16384", vr(XN(2), 4))
        a("s_waitcnt lgkmcnt(0)")
        final(a, m, 28, (96 + 16 * m, 104 + 16 * m))
    a("s_branch K_flush")

def p2_redo(a):
    for m in range(3):
        a.label("P2L_redo%d" % m)
        a("s_waitcnt vmcnt(0)")
        a("s_movk_i32 s51, %d", m * 2560)
        if m == 2:
            a("s_cmp_eq_u32 s61, 42")
            a("s_cselect_b32 s51, 2560, s51")
        for i in range(5):
            a("s_add_u32 m0, s49, %d", m * 20480 + i * 1024)
            a("buffer_load_dwordx4 v%d, %s, s51 offen sc1 lds", vO + i, sr(S_WS))
        a("s_waitcnt vmcnt(0)")
        a("s_sub_u32 s59, s59, 1")
        a("s_cmp_lg_u32 s59, 0")
        a("s_cbranch_scc1 P2L_scan%d", m)
        a("s_branch P2L_ok%d", m)

F_TOP = 0; F_P1 = 1024; F_H = 8192; F_XN = 12288; F_P2 = 16384
def ffn_w13(a):
    BL = [32 + 32 * i for i in range(7)]
    a("s_waitcnt lgkmcnt(0)")
    a("v_cmp_gt_u32 vcc, 8, v6")
    a("v_mov_b32 v8, s%d", P_U); a("v_mov_b32 v9, s%d", P_U + 1)
    a("v_mov_b32 v10, s%d", P_G); a("v_mov_b32 v11, s%d", P_G + 1)
    a("v_cndmask_b32 v8, v8, v10, vcc")
    a("v_cndmask_b32 v9, v9, v11, vcc")
    a("s_mul_i32 s48, s3, 160")
    a("v_add_u32 v10, s48, v3")
    a("v_mul_u32_u24 v10, 3072, v10")
    a("v_and_b32 v11, 7, v6")
    a("v_lshl_add_u32 v10, v11, 4, v10")
    a("s_lshl_b32 s48, s44, 7")
    a("v_add_u32 v10, s48, v10")
    a("v_add_co_u32 v8, vcc, v8, v10")
    a("v_addc_co_u32 v9, vcc, 0, v9, vcc")
    for u in range(5):
        for j in range(8):
            a("global_load_dwordx4 %s, v[8:9], off", vr(BL[u + 1] + 4 * j, 4))
            if not (u == 4 and j == 7):
                a("v_add_co_u32 v8, vcc, 0x%x, v8", 4 * 3072)
                a("v_addc_co_u32 v9, vcc, 0, v9, vcc")
    a("s_barrier")
    srd(a, S_X, P_X, 2048 * 1280)
    srd(a, S_WS, P_WS, WS_BYTES)
    a("s_mul_i32 s50, s3, 1024")
    a("s_add_u32 s50, s50, %d", F_XN)
    a("v_lshrrev_b32 v24, 5, v2")
    a("v_and_b32 v25, 31, v2")
    a("v_lshlrev_b32 v26, 9, v24")
    a("v_lshrrev_b32 v27, 2, v25")
    a("v_lshl_add_u32 v26, v27, 6, v26")
    a("v_lshl_add_u32 v26, v5, 2, v26")
    a("v_add_u32 v26, s50, v26")
    a("v_and_b32 v27, 1, v2")
    a("v_lshlrev_b32 v27, 9, v27")
    a("v_lshl_add_u32 v27, v3, 4, v27")
    a("v_add_u32 v27, s50, v27")
    a("s_lshl_b32 s50, s3, 10")
    a("s_add_u32 s50, s50, %d", F_P1)
    a("v_lshlrev_b32 v28, 9, v6")
    a("v_lshl_add_u32 v28, v3, 4, v28")
    a("v_add_u32 v28, s50, v28")
    a("v_min_u32 v25, 19, v25")
    a("v_lshlrev_b32 v24, 4, v24")
    smov64(a, 52, 0x0003000300030003)
    for u in range(5):
        a("s_waitcnt vmcnt(%d)", 8 * (4 - u))
        perm_unit(a, BL[u + 1], BL[u], 46, 47)
    stamp(a, 1)
    a("s_barrier")
    a("s_setprio 3")
    stamp(a, 2)
    a("v_mov_b32 v8, %d", F_TOP)
    a("ds_read_b64 v[12:13], v8")
    a("s_mul_i32 s50, s3, 320")
    a("s_waitcnt lgkmcnt(0)")
    a("v_readfirstlane_b32 s%d, v13", TAG)
    a("v_bfe_u32 v9, v12, v24, 16")
    a("v_lshlrev_b32 v11, 3, v9")
    a("buffer_load_dwordx2 v[12:13], v11, %s, 0 offen sc1", sr(S_WS))
    a("v_and_b32 v10, 1023, v9")
    a("v_lshrrev_b32 v9, 10, v9")
    a("v_lshl_add_u32 v9, v10, 1, v9")
    a("v_mul_u32_u24 v9, 1280, v9")
    a("v_lshl_add_u32 v9, v25, 4, v9")
    X = BL[5]
    a("buffer_load_dwordx4 %s, v9, %s, s50 offen", vr(X, 4), sr(S_X))
    a("s_waitcnt vmcnt(0)")
    poll_begin(a, "FF_sp")
    a("v_cmp_ne_u32 vcc, s%d, v13", TAG)
    a("s_cbranch_vccz FF_sok")
    a("buffer_load_dwordx2 v[12:13], v11, %s, 0 offen sc1", sr(S_WS))
    a("s_waitcnt vmcnt(0)")
    a("s_sub_u32 s59, s59, 1")
    a("s_cmp_lg_u32 s59, 0")
    a("s_cbranch_scc1 FF_sp")
    a.label("FF_sok")
    a("v_and_b32 v13, s7, v12")
    a("v_rcp_f32 v13, v13")
    a("v_lshlrev_b32 v12, 16, v12")
    norm8(a, X, X, 16, 12, 13, 7)
    for g in range(4):
        a("v_perm_b32 v%d, v%d, v%d, s%d", 16 + g, X + 2 + g // 2, X + g // 2, 46 + g % 2)
    a("ds_write2_b32 v26, v16, v17 offset0:0 offset1:4")
    a("ds_write2_b32 v26, v18, v19 offset0:8 offset1:12")
    for u in range(5):
        a("ds_read_b128 %s, v27 offset:%d", vr(X + 4 + 4 * u, 4), 64 * u)
    for u in range(5):
        a("s_waitcnt lgkmcnt(%d)", 4 - u)
        for t in range(8):
            d = vr(BL[6] + 4 * t, 4)
            a("v_mfma_f32_16x16x32_bf16 %s, %s, %s, %s", d, vr(BL[u] + 4 * t, 4), vr(X + 4 + 4 * u, 4), d if u else "0")
    a("s_mov_b64 exec, s[52:53]")
    for t in range(8):
        a("ds_write_b128 v28, %s offset:%d", vr(BL[6] + 4 * t, 4), t * 64)
    a("s_mov_b64 exec, -1")
    a("s_waitcnt lgkmcnt(0)")
    stamp(a, 3)
    a("s_barrier")
    a("s_cmp_ge_u32 s3, 2")
    a("s_cbranch_scc1 FF_w13_b3")
    a("v_and_b32 v8, 7, v2")
    a("v_lshlrev_b32 v8, 4, v8")
    a("v_lshrrev_b32 v9, 3, v2")
    a("v_add_lshl_u32 v8, v8, v9, 2")
    a("s_lshl_b32 s50, s3, 9")
    a("s_add_u32 s50, s50, %d", F_P1)
    a("v_add_u32 v8, s50, v8")
    a("v_add_u32 v9, 32, v8")
    for i in range(2):
        a("ds_read2st64_b32 %s, v8 offset0:%d offset1:%d", vr(32 + 2 * i, 2), 8 * i, 8 * i + 4)
        a("ds_read2st64_b32 %s, v9 offset0:%d offset1:%d", vr(36 + 2 * i, 2), 8 * i, 8 * i + 4)
    a("s_lshl_b32 s50, s3, 7")
    a("s_add_u32 s50, s50, %d", F_H)
    a("v_lshl_add_u32 v7, v2, 1, s50")
    a("s_waitcnt lgkmcnt(0)")
    a("v_pk_add_f32 v[32:33], v[32:33], v[34:35]")
    a("v_pk_add_f32 v[36:37], v[36:37], v[38:39]")
    a("v_add_f32 v32, v32, v33")
    a("v_add_f32 v36, v36, v37")
    a("v_cvt_pk_bf16_f32 v33, v32, v36")
    a("v_lshlrev_b32 v32, 16, v33")
    a("v_and_b32 v36, s7, v33")
    a("v_mul_f32 v10, 0x%x, v32", f32(-1.4426950408889634))
    a("v_exp_f32 v10, v10")
    a("v_add_f32 v10, 1.0, v10")
    a("v_rcp_f32 v10, v10")
    a("v_mul_f32 v10, v10, v32")
    bf16r(a, 10, 7)
    a("v_mul_f32 v10, v10, v36")
    a("v_cvt_pk_bf16_f32 v10, v10, v10")
    a("ds_write_b16 v7, v10")
    a("s_waitcnt lgkmcnt(0)")
    a.label("FF_w13_b3")
    a("s_barrier")
    a.label("FF_ep")
    a("s_cmp_lg_u32 s3, 2")
    a("s_cbranch_scc1 FF_end")
    a("s_cmp_lg_u32 s44, 23")
    a("s_cbranch_scc1 FF_end")
    a("v_lshlrev_b32 v8, 7, v2")
    poll_begin(a, "FF_ek")
    a("s_sleep 32")
    a("s_mov_b32 s50, 0x%x", FLAG_OFF)
    for n in range(3):
        a("buffer_load_dwordx4 %s, v8, %s, s50 offen sc1", vr(12 + 4 * n, 4), sr(S_WS))
        if n < 2: a("s_add_u32 s50, s50, 8192")
    a("s_waitcnt vmcnt(0)")
    a("v_mov_b32 v10, 0")
    for n in range(12):
        a("v_xor_b32 v11, s%d, v%d", TAG, 12 + n)
        a("v_or_b32 v10, v10, v11")
    a("v_cmp_ne_u32 vcc, 0, v10")
    poll_end(a, "FF_ek", "FF_eok", 0)
    a("v_mov_b32 v10, s%d", TAG)
    a("s_mov_b32 s6, 0x%x", EPOCH_OFF)
    a("s_mov_b64 exec, 1")
    a("buffer_store_dword v10, off, %s, s6 sc1", sr(S_WS))
    a("s_mov_b64 exec, -1")
    a("s_branch FF_end")

def ffn_w2(a):
    BL = [32 + 32 * i for i in range(7)]
    srd(a, S_D, P_D, 1536 * 1280)
    a("s_sub_u32 s48, s3, 4")
    a("s_mul_i32 s54, s44, %d", 64 * 1280)
    a("s_lshl_b32 s55, s48, 8")
    a("s_add_u32 s54, s54, s55")
    a("v_mul_u32_u24 v24, %d, v3", 8 * 1280)
    a("v_lshl_add_u32 v24, v6, 4, v24")
    def dload(blk, off):
        for j in range(8):
            if j % 4 == 0: a("s_add_u32 s55, s54, %d", off + (j // 4) * 5120)
            a("buffer_load_dwordx4 %s, v24, %s, s55 offen offset:%d", vr(blk + 4 * j, 4), sr(S_D), (j % 4) * 1280)
    a("s_cmp_lg_u32 s3, 7")
    a("s_cbranch_scc1 FF_d0")
    dload(BL[1], 0); dload(BL[2], 32 * 1280)
    a("s_barrier")
    a("s_branch FF_top")
    a.label("FF_d0")
    a("s_barrier")
    a("s_sleep 2")
    dload(BL[1], 0); dload(BL[2], 32 * 1280)
    a("s_branch FF_b1")
    a.label("FF_top")
    a("s_setprio 3")
    a("v_lshlrev_b32 v8, 4, v2")
    a("s_mov_b32 s50, 0x%x", KEY2_OFF)
    poll_begin(a, "FF_kp")
    for i in range(4):
        a("buffer_load_dwordx4 %s, v8, %s, s50 offen offset:%d sc1", vr(32 + 4 * i, 4), sr(S_WS), i * 1024)
    a("s_waitcnt vmcnt(0)")
    a("v_mov_b32 v10, 0")
    for i in range(8):
        a("v_xor_b32 v11, s%d, v%d", TAG, 33 + 2 * i)
        a("v_or_b32 v10, v10, v11")
    a("v_cmp_ne_u32 vcc, 0, v10")
    poll_end(a, "FF_kp", "FF_kok", 8)
    stamp(a, 2)
    a("v_mov_b32 v10, v32"); a("v_mov_b32 v11, v34")
    for i in range(2, 8):
        a("v_med3_u32 v11, v10, v11, v%d", 32 + 2 * i)
        a("v_max_u32 v10, v10, v%d", 32 + 2 * i)
    a("v_mov_b32 v12, v10")
    wave_umax(a, 12, 50)
    a("v_cmp_eq_u32 vcc, s50, v10")
    a("v_cndmask_b32 v12, v10, v11, vcc")
    wave_umax(a, 12, 51)
    a("s_and_b32 s52, s50, 0xffff")
    a("s_lshl_b32 s53, s51, 16")
    a("s_or_b32 s52, s52, s53")
    a("v_mov_b32 v16, s52"); a("v_mov_b32 v17, s%d", TAG)
    a("v_mov_b32 v18, s50"); a("v_mov_b32 v19, s51")
    a("v_mov_b32 v8, %d", F_TOP)
    a("ds_write_b128 v8, v[16:19]")
    a("s_cmp_lg_u32 s44, 0")
    a("s_cbranch_scc1 FF_notop")
    for v, src in ((20, 18), (21, 19)):
        a("v_and_b32 v%d, s7, v%d", v, src)
        a("v_ashrrev_i32 v22, 31, v%d", v)
        a("v_not_b32 v22, v22")
        a("v_or_b32 v22, 0x80000000, v22")
        a("v_xor_b32 v%d, v%d, v22", v, v)
        a("v_and_b32 v%d, s7, v%d", v, v)
        a("v_mul_f32 v%d, 0x%x, v%d", v, f32(-1.4426950408889634), v)
        a("v_exp_f32 v%d, v%d", v, v)
        a("v_add_f32 v%d, 1.0, v%d", v, v)
        a("v_rcp_f32 v%d, v%d", v, v)
    a("v_cvt_pk_bf16_f32 v22, v20, v21")
    a("v_mov_b32 v20, v16"); a("v_mov_b32 v21, v17"); a("v_mov_b32 v23, v17")
    a("s_mov_b64 exec, 1")
    a("s_mov_b32 s6, 0x%x", TOP_OFF)
    a("buffer_store_dwordx4 v[20:23], off, %s, s6 sc1", sr(S_WS))
    a("s_mov_b64 exec, -1")
    a.label("FF_notop")
    a("s_waitcnt lgkmcnt(0)")
    a("s_setprio 0")
    a.label("FF_b1")
    a("s_barrier")
    a("s_sleep 2")
    a("s_cmp_lg_u32 s3, 4")
    a("s_cbranch_scc1 FF_d1")
    dload(BL[3], 1024); dload(BL[4], 32 * 1280 + 1024)
    a.label("FF_d1")
    a("v_and_b32 v26, 1, v2")
    a("v_lshlrev_b32 v26, 7, v26")
    a("v_lshl_add_u32 v26, v3, 4, v26")
    a("v_add_u32 v26, %d, v26", F_H)
    a("s_lshl_b32 s50, s48, 10")
    a("s_add_u32 s50, s50, %d", F_P2)
    a("v_lshlrev_b32 v29, 9, v6")
    a("v_lshl_add_u32 v29, v3, 4, v29")
    a("v_add_u32 v29, s50, v29")
    a("v_and_b32 v30, 3, v2")
    a("v_lshlrev_b32 v30, 5, v30")
    a("v_lshrrev_b32 v31, 2, v2")
    a("v_add_lshl_u32 v30, v30, v31, 2")
    a("v_add_u32 v30, s50, v30")
    a("v_lshlrev_b32 v31, 4, v2")
    smov64(a, 52, 0x0003000300030003)
    a("s_mul_i32 s56, s44, 10240")
    a("s_lshl_b32 s50, s48, 10")
    a("s_add_u32 s56, s56, s50")
    a("s_add_u32 s56, s56, 0x%x", Y_OFF)
    a("s_barrier")
    a("s_waitcnt vmcnt(0)")
    perm_unit(a, BL[1], BL[0], 46, 47)
    perm_unit(a, BL[2], BL[1], 46, 47)
    a("s_cmp_lg_u32 s3, 4")
    a("s_cbranch_scc1 FF_d2")
    perm_unit(a, BL[3], BL[2], 46, 47)
    perm_unit(a, BL[4], BL[3], 46, 47)
    a.label("FF_d2")
    a("s_barrier")
    stamp(a, 4)
    a("ds_read_b128 v[16:19], v26")
    a("ds_read_b128 v[20:23], v26 offset:64")
    a("v_mov_b32 v9, s%d", TAG); a("v_mov_b32 v11, s%d", TAG)
    a("v_mov_b32 v13, s%d", TAG); a("v_mov_b32 v15, s%d", TAG)
    def f2(b0, yoff):
        a("s_waitcnt lgkmcnt(0)")
        for kk in range(2):
            for t in range(8):
                d = vr(BL[6] + 4 * t, 4)
                a("v_mfma_f32_16x16x32_bf16 %s, %s, %s, %s", d, vr(BL[b0 + kk] + 4 * t, 4), vr(16 + 4 * kk, 4), d if kk else "0")
        a("s_mov_b64 exec, s[52:53]")
        for t in range(8):
            a("ds_write_b128 v29, %s offset:%d", vr(BL[6] + 4 * t, 4), t * 64)
        a("s_mov_b64 exec, -1")
        a("ds_read_b32 v8, v30")
        a("ds_read_b32 v10, v30 offset:64")
        a("ds_read_b32 v12, v30 offset:512")
        a("ds_read_b32 v14, v30 offset:576")
        a("s_add_u32 s50, s56, %d", yoff)
        a("s_add_u32 s51, s50, 5120")
        a("s_waitcnt lgkmcnt(2)")
        a("buffer_store_dwordx4 v[8:11], v31, %s, s50 offen sc1", sr(S_WS))
        a("s_waitcnt lgkmcnt(0)")
        a("buffer_store_dwordx4 v[12:15], v31, %s, s51 offen sc1", sr(S_WS))
    f2(0, 0)
    a("s_cmp_lg_u32 s3, 4")
    a("s_cbranch_scc1 FF_end")
    f2(2, 4096)

def ffn_ids(a):
    a("s_sub_u32 s44, s5, 29")
    a("s_mul_i32 s46, s4, 3")
    a("s_add_u32 s44, s44, s46")
    a("s_mov_b32 s46, 0x05040100")
    a("s_mov_b32 s47, 0x07060302")

def body():
    a = Asm()
    entry(a)
    a("s_cmp_ge_u32 s5, 24")
    a("s_cbranch_scc1 K_other")
    a("s_cmp_ge_u32 s3, 4")
    a("s_cbranch_scc1 K_C")
    p1_loader(a)
    a("s_branch K_p2L")
    a.label("K_C")
    p1_setup(a)
    p1_compute(a)
    a.label("K_p2C")
    p2_compute(a)
    a.label("K_flush")
    stamp(a, 7)
    if gen.STAMPS: srd(a, S_WS, P_WS, WS_BYTES)
    stamp_flush(a, [OPT['sw0'], OPT['sw1']])
    a("s_endpgm")
    a.label("K_p2L")
    p2_loader(a)
    a.label("K_other")
    a("s_cmp_lt_u32 s3, 4")
    a("s_cbranch_scc1 K_otherL")
    a("s_setprio 2")
    rpass(a)
    a("s_setprio 0")
    stamp(a, 1)
    a("s_cmp_ge_u32 s5, 29")
    a("s_cbranch_scc1 K_ffn2")
    p2_scalars(a)
    a("s_cmp_eq_u32 s63, 0")
    a("s_cbranch_scc1 K_end")
    srd(a, S_OUT, P_OUT, 2048 * 1280)
    p2_waddr(a, 20)
    a("v_mov_b32 v16, %d", L_ST)
    a("v_mov_b32 v17, s%d", TAG)
    a("ds_write_b32 v16, v17")
    a("s_cmp_lg_u32 s3, 4")
    a("s_cbranch_scc1 HC_go")
    poll_begin(a, "HC_poll")
    a("s_sleep 32")
    a("s_mov_b32 s6, 0x%x", TOP_OFF)
    a("buffer_load_dwordx2 v[16:17], off, %s, s6 sc1", sr(S_WS))
    a("s_waitcnt vmcnt(0)")
    a("v_cmp_ne_u32 vcc, s%d, v17", TAG)
    poll_end(a, "HC_poll", "HC_go", 0)
    a("s_waitcnt lgkmcnt(0)")
    a("s_barrier")
    a("s_barrier")
    a("s_branch K_p2C")
    a.label("K_otherL")
    a("s_cmp_ge_u32 s5, 29")
    a("s_cbranch_scc1 K_ffn1")
    helper_loader(a)
    a("s_branch K_p2L")
    p1_slow(a)
    upd_apply(a)
    if OPT["hint"]: p2_redo(a)
    a.label("K_ffn1")
    ffn_ids(a)
    ffn_w13(a)
    a.label("K_ffn2")
    ffn_ids(a)
    ffn_w2(a)
    a.label("FF_end")
    stamp(a, 7)
    if gen.STAMPS: srd(a, S_WS, P_WS, WS_BYTES)
    stamp_flush(a, [0, 7], 1)
    a.label("K_end")
    a("s_endpgm")
    return a

if __name__ == "__main__":
    out = "v15.s"
    for x in sys.argv[1:]:
        if x == "stamps": gen.STAMPS = True
        elif x == "cyc": gen.CYC = True
        elif x.startswith("out="): out = x[4:]
        elif "=" in x:
            k, v = x.split("="); OPT[k] = int(v)
    k = NAME + "_kernel"
    t = hazard.fix(body().text())
    if OPT['align']: t = align.fix(t)
    open(out, "w").write(module([(k, 256, 512, LDS_ALL)], [(k, t, 256, 102, 256)]))
```
